```python
import torch

def _softmax(x, axis=-1):
    return torch.softmax(x, dim=axis)
def _gelu(x):
    return torch.nn.functional.gelu(x, approximate="tanh")
def _silu(x):
    return torch.nn.functional.silu(x)
def _sigmoid(x):
    return torch.sigmoid(x)
def _layernorm(x, axis=-1, eps=1e-5):
    m = x.mean(dim=axis, keepdim=True)
    v = x.var(dim=axis, keepdim=True, unbiased=False)
    return (x - m) / torch.sqrt(v + eps)
def _scatter_add(tgt, idx, src, axis=0):
    return tgt.clone().index_add_(axis, idx, src)
def _segment_sum(src, seg, n):
    out = torch.zeros((n,) + src.shape[1:], dtype=src.dtype)
    return out.index_add_(0, seg, src)
def _pad(x, pw):
    flat = tuple(v for pair in reversed(pw) for v in pair)
    return torch.nn.functional.pad(x, flat)

kernel_name = 'parallel_sum__spectral_gfnet__dense_activation_silu__prompt'

def setup_inputs():

    _w = (lambda a: (lambda t: t.to(torch.bfloat16) if t.is_floating_point() else t)(torch.as_tensor(a)))
    def _A_setup():
        B, S, D = 1, 2048, 512
        Df = D // 2 + 1
        return {
            "x": _w((lambda *s: torch.randn(*s, dtype=torch.bfloat16) * 0.05)(B, S, D)),
            "w_r": _w((lambda *s: torch.randn(*s, dtype=torch.bfloat16) * 0.8)(S, Df) * 0.02),
            "w_i": _w((lambda *s: torch.randn(*s, dtype=torch.bfloat16) * 0.8)(S, Df) * 0.02),
        }
    _A_in = _A_setup()

    def _B_setup():
        B, S, D, F = 1, 2048, 512, 1376
        return {
            "x": _w((lambda *s: torch.randn(*s, dtype=torch.bfloat16) * 0.05)(B, S, D)),
            "w1": _w((lambda *s: torch.randn(*s, dtype=torch.bfloat16) * 0.8)(D, F) * (D ** -0.5)),
            "w2": _w((lambda *s: torch.randn(*s, dtype=torch.bfloat16) * 0.1)(F, D) * (F ** -0.5)),
        }
    _B_in = _B_setup()

    return {
        "A_x": _A_in["x"],
        "A_w_r": _A_in["w_r"],
        "A_w_i": _A_in["w_i"],
        "B_x": _B_in["x"],
        "B_w1": _B_in["w1"],
        "B_w2": _B_in["w2"],
    }

def reference(A_x, A_w_r, A_w_i, B_x, B_w1, B_w2):
    def _A_ref(x, w_r, w_i):
        B, S, D = x.shape
        X = (lambda x, axes=(-2,-1): torch.fft.rfft2(x.float(), dim=axes))(x, axes=(-2, -1))
        W = w_r + 1j * w_i
        X = X * W
        y = (lambda x, s, axes=(-2,-1): torch.fft.irfft2(x, s=s, dim=axes).to(torch.bfloat16))(X, (S, D), axes=(-2, -1))
        return y

    def _B_ref(x, w1, w2):
        h = torch.einsum("bsd,df->bsf", x, w1)
        h = _silu(h)
        out = torch.einsum("bsf,fd->bsd", h, w2)
        return out

    x = A_x
    xn = _layernorm(x, axis=-1)
    return x + _A_ref(xn, A_w_r, A_w_i) + _B_ref(xn, B_w1, B_w2)
```

```python
import re

def regset(tok):
    tok = tok.strip()
    neg = tok.startswith('-')
    if neg: tok = tok[1:]
    m = re.match(r'^abs\((.*)\)$', tok)
    if m: tok = m.group(1)
    m = re.match(r'^\|(.*)\|$', tok)
    if m: tok = m.group(1)
    m = re.match(r'^([vsa])(\d+)$', tok)
    if m: return {(m.group(1), int(m.group(2)))}
    m = re.match(r'^([vsa])\[(\d+):(\d+)\]$', tok)
    if m: return {(m.group(1), i) for i in range(int(m.group(2)), int(m.group(3)) + 1)}
    if tok in ('vcc', 'vcc_lo', 'vcc_hi'): return {('vcc', 0)}
    if tok in ('exec', 'exec_lo', 'exec_hi'): return {('exec', 0)}
    if tok == 'm0': return {('m0', 0)}
    return set()

TRANS = ('v_exp_f32', 'v_log_f32', 'v_rcp_f32', 'v_rsq_f32', 'v_sqrt_f32', 'v_sin_f32', 'v_cos_f32', 'v_rcp_iflag_f32')

def V(n, cnt=1):
    return 'v%d' % n if cnt == 1 else 'v[%d:%d]' % (n, n + cnt - 1)
def Sg(n, cnt=1):
    return 's%d' % n if cnt == 1 else 's[%d:%d]' % (n, n + cnt - 1)

class Ins:
    __slots__ = ('op', 'kind', 'wr', 'rd', 'srcc', 'passes', 'text', 'ws', 'dst_exact', 'storedata', 'rdab')

class Asm:
    def __init__(self):
        self.lines = []
        self.hist = []
        self.alts = []
        self.noflush = False
        self.nops = 0
    def raw(self, s):
        self.lines.append(s)
    def comment(self, s):
        self.lines.append('    ; ' + s)
    def label(self, name):
        self.flush()
        self.lines.append(name + ':')
    def flush(self, n=None):
        need = 0
        for hist in [self.hist] + self.alts:
            dist = 0
            for ins in reversed(hist):
                w = 0
                if ins.kind == 'mfma': w = {4: 8, 8: 12, 16: 20}[ins.passes]
                elif ins.kind == 'valu': w = 5 if any(r[0] in ('s', 'vcc', 'exec') for r in ins.wr) else 2
                elif ins.kind == 'store': w = 2
                elif ins.kind == 'salu' and ('m0', 0) in ins.wr: w = 1
                need = max(need, w - dist)
                dist += ins.ws
                if dist > 24: break
        if need > 0: self.nop(need)
        self.hist = []; self.alts = []
    def skip(self, branch_op, label, body):
        self.noflush = True
        self(branch_op + ' ' + label)
        self.noflush = False
        snap = [list(self.hist)] + [list(a) for a in self.alts]
        body()
        self.lines.append(label + ':')
        self.alts = self.alts + snap
    def nop(self, n):
        while n > 0:
            k = min(n, 16)
            self.lines.append('    s_nop %d' % (k - 1))
            i = Ins(); i.op = 's_nop'; i.kind = 'nop'; i.wr = set(); i.rd = set(); i.srcc = set(); i.passes = 0; i.ws = k; i.dst_exact = None; i.storedata = set(); i.rdab = set()
            self.hist.append(i); self.nops += k
            for a in self.alts: a.append(i)
            n -= k
    def __call__(self, text):
        t = text.split(';')[0].strip()
        m = re.match(r'^(\S+)\s*(.*)$', t)
        op, rest = m.group(1), m.group(2)
        if (op == 's_branch' or op.startswith('s_cbranch')) and not self.noflush:
            self.flush()
        ops = []
        depth = 0; cur = ''
        for ch in rest:
            if ch in '[(': depth += 1
            if ch in '])': depth -= 1
            if ch == ',' and depth == 0: ops.append(cur.strip()); cur = ''
            else: cur += ch
        if cur.strip(): ops.append(cur.strip())
        mods = ''
        if ops:
            parts = ops[-1].split()
            if len(parts) > 1:
                ops[-1] = parts[0]; mods = ' '.join(parts[1:])
        i = Ins(); i.op = op; i.text = text; i.ws = 1; i.wr = set(); i.rd = set(); i.srcc = set(); i.passes = 0; i.dst_exact = None; i.storedata = set(); i.rdab = set()
        base = re.sub(r'_(e32|e64|dpp|sdwa)$', '', op)
        if op.startswith('v_mfma'):
            i.kind = 'mfma'
            i.passes = 8 if '32x32x16' in op else 4
            i.wr = regset(ops[0]); i.rdab = regset(ops[1]) | regset(ops[2]); i.srcc = regset(ops[3]); i.rd = i.rdab | i.srcc
            i.dst_exact = ops[0]
            i.text = (ops[3],)
        elif op.startswith('v_'):
            i.kind = 'valu'
            if base.startswith('v_cmp'):
                i.wr = regset(ops[0])
                if base.startswith('v_cmpx'): i.wr |= {('exec', 0)}
                for o in ops[1:]: i.rd |= regset(o)
            elif base in ('v_add_co_u32', 'v_sub_co_u32', 'v_addc_co_u32', 'v_subb_co_u32', 'v_subrev_co_u32', 'v_mad_u64_u32', 'v_div_scale_f32'):
                i.wr = regset(ops[0]) | regset(ops[1])
                for o in ops[2:]: i.rd |= regset(o)
            elif base in ('v_permlane16_swap_b32', 'v_permlane32_swap_b32', 'v_swap_b32'):
                i.wr = regset(ops[0]) | regset(ops[1]); i.rd = set(i.wr)
            else:
                i.wr = regset(ops[0])
                for o in ops[1:]: i.rd |= regset(o)
                if base in ('v_fmac_f32', 'v_dot2c_f32_bf16', 'v_writelane_b32', 'v_pk_fmac_f16'): i.rd |= i.wr
                if base == 'v_cndmask_b32' and len(ops) == 3: i.rd |= {('vcc', 0)}
        elif op.startswith('ds_'):
            i.kind = 'ds'
            if op.startswith('ds_read') or op.startswith('ds_bpermute') or op.startswith('ds_permute') or op.startswith('ds_swizzle') or '_rtn' in op:
                i.wr = regset(ops[0])
                for o in ops[1:]: i.rd |= regset(o)
                if 'd16' in op: i.rd |= i.wr
            else:
                for o in ops: i.rd |= regset(o)
        elif op.startswith('buffer_') or op.startswith('global_'):
            if op in ('buffer_inv', 'buffer_wbl2'):
                i.kind = 'vmem'
            elif 'load' in op:
                i.kind = 'vmem'
                if re.search(r'\blds\b', mods):
                    for o in ops: i.rd |= regset(o)
                    i.rd |= {('m0', 0)}
                    i.kind = 'ldsdma'
                else:
                    i.wr = regset(ops[0])
                    for o in ops[1:]: i.rd |= regset(o)
                    if 'd16' in op: i.rd |= i.wr
            else:
                i.kind = 'store'
                for o in ops: i.rd |= regset(o)
                d = ops[0] if op.startswith('buffer_') else ops[1]
                if 'x4' in op or 'x3' in op: i.storedata = regset(d)
                if 'atomic' in op and 'sc0' in mods: i.wr = regset(d)
        elif op.startswith('s_'):
            i.kind = 'salu'
            if op in ('s_waitcnt', 's_barrier', 's_nop', 's_endpgm', 's_branch', 's_sleep', 's_setprio') or op.startswith('s_cbranch') :
                pass
            elif op.startswith('s_cmp') or op.startswith('s_bitcmp'):
                for o in ops: i.rd |= regset(o)
            else:
                i.wr = regset(ops[0])
                for o in ops[1:]: i.rd |= regset(o)
                if 'saveexec' in op: i.wr |= {('exec', 0)}
        else:
            raise ValueError('unknown op ' + op)
        need = 0
        isv = i.kind == 'valu'
        vm = i.kind in ('vmem', 'store', 'ds', 'ldsdma')
        for hist in [self.hist] + self.alts:
            dist = 0
            for p in reversed(hist):
                w = 0
                if p.kind == 'mfma':
                    full = {4: 8, 8: 12, 16: 20}[p.passes]
                    if i.kind == 'mfma':
                        if i.rdab & p.wr: w = max(w, full)
                        if i.srcc & p.wr:
                            if not (i.text[0] == p.dst_exact and i.passes == p.passes): w = max(w, full - 2)
                        elif (i.wr & p.wr): w = max(w, full)
                    elif isv:
                        if (i.rd | i.wr) & p.wr: w = max(w, full)
                        if i.wr & p.srcc: w = max(w, {4: 3, 8: 7, 16: 15}[p.passes])
                    elif vm:
                        if (i.rd | i.wr) & p.wr: w = max(w, full)
                        if i.wr & p.srcc: w = max(w, {4: 3, 8: 7, 16: 15}[p.passes])
                elif p.kind == 'valu':
                    vw = {r for r in p.wr if r[0] in ('v', 'a')}
                    sw = {r for r in p.wr if r[0] in ('s', 'vcc')}
                    if i.kind == 'mfma' and (i.rd & vw): w = max(w, 2)
                    if isv:
                        pb = re.sub(r'_(e32|e64|dpp|sdwa)$', '', p.op)
                        if pb in TRANS and (i.rd & vw): w = max(w, 1)
                        if (i.rd & sw): w = max(w, 4 if base in ('v_readlane_b32', 'v_writelane_b32', 'v_div_fmas_f32') else 2)
                        if base in ('v_readfirstlane_b32', 'v_readlane_b32') and (i.rd & vw): w = max(w, 1)
                        if base.startswith('v_permlane') and (i.rd & vw): w = max(w, 2)
                        if ('dpp' in op or 'row_' in mods or 'quad_perm' in mods) and (i.rd & vw): w = max(w, 2)
                        if ('exec', 0) in p.wr: w = max(w, 5)
                    if i.kind == 'mfma' and ('exec', 0) in p.wr: w = max(w, 4)
                    if i.kind in ('vmem', 'store', 'ldsdma') and (i.rd & sw): w = max(w, 5)
                    if i.kind == 'salu' and (i.rd & sw): w = max(w, 2)
                elif p.kind == 'store':
                    if p.storedata and (i.wr & p.storedata): w = max(w, 2)
                elif p.kind == 'salu':
                    if ('m0', 0) in p.wr and i.kind == 'ldsdma': w = max(w, 1)
                need = max(need, w - dist)
                dist += p.ws
                if dist > 24: break
        if need > 0: self.nop(need)
        self.lines.append('    ' + text)
        self.hist.append(i)
        if len(self.hist) > 64: self.hist = self.hist[-40:]
        for a in self.alts: a.append(i)
        keep = []
        for a in self.alts:
            common = 0
            while common < min(len(a), len(self.hist)) and a[-1 - common] is self.hist[-1 - common]: common += 1
            if sum(x.ws for x in a[len(a) - common:]) <= 24 and common < len(a): keep.append(a[-40:])
        self.alts = keep
        if op in ('s_branch',) or op.startswith('s_cbranch'):
            pass
    def text(self):
        return '\n'.join(self.lines) + '\n'
```

```python
import sys, struct
sys.path.insert(0, 'gen')
from asmlib import *

NAME = 'parallel_sum__spectral_gfnet__dense_activation_silu__prompt'
HF_OFF = 0
AB_OFF = 6 << 20
DB_OFF = 9 << 20
WS_BYTES = 12 << 20

def f2u(x): return struct.unpack('<I', struct.pack('<f', x))[0]
def hx(x): return '0x%08x' % (x & 0xffffffff)
def fl(x): return hx(f2u(x))

S_X, S_W1, S_W2, S_WS, S_OUT, S_WR, S_WI = 8, 12, 16, 20, 24, 28, 32
def srd(n): return 's[%d:%d]' % (n, n + 3)

class VM:
    def __init__(self, a): self.a = a; self.q = []
    def issue(self, tag): self.q.append(tag)
    def wait(self, tags):
        idx = max(i for i, t in enumerate(self.q) if t in tags)
        n = len(self.q) - 1 - idx
        assert n <= 63
        self.a('s_waitcnt vmcnt(%d)' % n)
        self.q = self.q[idx + 1:] if False else self.q
    def clone(self):
        v = VM(self.a); v.q = list(self.q); return v

def prologue(a, nwg, exit_label):
    a('s_cmp_ge_u32 s2, %d' % nwg)
    a('s_cbranch_scc1 %s' % exit_label)
    a('s_load_dwordx4 s[36:39], s[0:1], 0')
    a('s_load_dwordx2 s[40:41], s[0:1], 16')
    a('s_load_dwordx4 s[44:47], s[0:1], 32')
    a('s_load_dwordx2 s[48:49], s[0:1], 48')
    a('s_load_dwordx2 s[50:51], s[0:1], 64')
    a('v_lshrrev_b32 v1, 6, v0')
    a('v_and_b32 v2, 63, v0')
    a('v_readfirstlane_b32 s3, v1')
    a('v_and_b32 v3, 15, v2')
    a('v_lshrrev_b32 v4, 4, v2')
    a('s_waitcnt lgkmcnt(0)')
    for home, lo, nbytes in ((S_X, 36, 2 << 20), (S_WR, 38, 2048 * 514), (S_WI, 40, 2048 * 514), (S_W1, 44, 512 * 2752),
                             (S_W2, 46, 1376 * 1024), (S_OUT, 48, 2 << 20), (S_WS, 50, WS_BYTES)):
        a('s_mov_b32 s%d, s%d' % (home, lo))
        a('s_and_b32 s%d, s%d, 0xffff' % (home + 1, lo + 1))
        a('s_mov_b32 s%d, %s' % (home + 2, hx(nbytes)))
        a('s_mov_b32 s%d, 0x00020000' % (home + 3))

def rbf16(a, v, tmp):
    a('v_cvt_pk_bf16_f32 %s, %s, %s' % (tmp, v, v))
    a('v_lshlrev_b32 %s, 16, %s' % (v, tmp))

def gen_spec_strip(a, SB, sb, uid):
    a.comment('spectral strip generation')
    a('s_lshl_b32 s52, %s, 5' % sb)
    a('s_sub_u32 s53, s52, %d' % (9 * 32 - 1))
    a('s_cmp_lt_u32 %s, 9' % sb)
    a('s_cselect_b32 s52, s52, s53')
    a('v_mul_u32_u24 v10, s52, v0')
    a('v_and_b32 v10, 511, v10')
    a('v_cvt_f32_u32 v10, v10')
    a('v_cvt_f32_u32 v11, v0')
    a('v_mul_f32 v10, %s, v10' % fl(1 / 512))
    a('v_mul_f32 v11, %s, v11' % fl(1 / 256))
    for i in range(16):
        if i:
            a('v_add_f32 v10, v10, v11')
            a('v_fract_f32 v10, v10')
        a('v_cos_f32 v%d, v10' % (12 + i))
        a('v_sin_f32 v%d, v10' % (28 + i))
    for p in range(8):
        a('v_cvt_pk_bf16_f32 v%d, v%d, v%d' % (44 + p, 12 + 2 * p, 13 + 2 * p))
    for p in range(8):
        a('v_cvt_pk_bf16_f32 v%d, -v%d, -v%d' % (52 + p, 28 + 2 * p, 29 + 2 * p))
    a('s_cmp_eq_u32 %s, 8' % sb)
    def z():
        a('v_and_b32 v44, 0xffff, v44')
        for p in range(1, 16): a('v_mov_b32 v%d, 0' % (44 + p))
    a.skip('s_cbranch_scc0', 'L_nz_%s' % uid, z)
    a('v_lshlrev_b32 v10, 6, v0')
    a('v_and_b32 v11, 8, v0')
    a('v_lshl_add_u32 v10, v11, 2, v10')
    a('v_xor_b32 v11, 32, v10')
    a('ds_write_b128 v10, v[44:47] offset:%d' % (SB))
    a('ds_write_b128 v10, v[48:51] offset:%d' % (SB + 16))
    a('ds_write_b128 v11, v[52:55] offset:%d' % (SB))
    a('ds_write_b128 v11, v[56:59] offset:%d' % (SB + 16))

XF = 64
ACC = 128
BF = 160
MF = 192
CS = 208
SS = 224
GG = 232
ONES = 240
ST = 244
VTR0, VTR1, VXO, VWO, VL16 = 5, 6, 7, 8, 9
def xf(t, kk): return V(XF + (t * 8 + kk) * 4, 4)
def acc(nt, t): return V(ACC + (nt * 2 + t) * 4, 4)
def accn(nt, t): return ACC + (nt * 2 + t) * 4
def bf(buf, nt): return V(BF + buf * 16 + nt * 4, 4)

def g1_round(a, vm, rnd, types, uid, tagf):
    RB = rnd * 65536
    def reads(kk):
        buf = kk & 1
        for st in range(2):
            for i in range(2):
                nt = st * 2 + i
                for h2 in range(2):
                    a('ds_read_b64_tr_b16 %s, v%d offset:%d' % (V(BF + buf * 16 + nt * 4 + h2 * 2, 2), VTR0 + i, st * 32768 + kk * 2048 + h2 * 256))
    vm.wait(tagf(0)); a('s_waitcnt lgkmcnt(0)'); a('s_barrier')
    reads(0)
    for kk in range(8):
        a('s_waitcnt lgkmcnt(0)')
        if kk + 1 < 8:
            if (kk + 1) % 2 == 0:
                vm.wait(tagf((kk + 1) // 2)); a('s_barrier')
            reads(kk + 1)
        buf = kk & 1
        for nt in range(4):
            for t in range(2):
                c = '0' if kk == 0 else acc(nt, t)
                if types[nt >> 1] == 'S':
                    a('v_mfma_f32_16x16x32_bf16 %s, %s, %s, %s' % (acc(nt, t), xf(t, kk), bf(buf, nt), c))
                else:
                    a('v_mfma_f32_16x16x32_bf16 %s, %s, %s, %s' % (acc(nt, t), bf(buf, nt), xf(t, kk), c))
        if rnd == 0:
            for t in range(2):
                c = '0' if kk == 0 else V(SS + 4 * t, 4)
                a('v_mfma_f32_16x16x32_bf16 %s, %s, %s, %s' % (V(SS + 4 * t, 4), V(ONES, 4), xf(t, kk), c))
                c = '0' if kk == 0 else V(GG + 4 * t, 4)
                a('v_mfma_f32_16x16x32_bf16 %s, %s, %s, %s' % (V(GG + 4 * t, 4), xf(t, kk), xf(t, kk), c))
        ftiles = [nt for nt in range(4) if types[nt >> 1] == 'F']
        if ftiles:
            a('s_cmp_eq_u32 s41, %d' % (kk & 3))
            def body():
                for nt in ftiles:
                    a('v_mfma_f32_16x16x32_bf16 %s, %s, %s, %s' % (V(CS + 4 * nt, 4), bf(buf, nt), V(ONES, 4), V(CS + 4 * nt, 4)))
            a.skip('s_cbranch_scc0', 'L_cs_%s_%d' % (uid, kk), body)

def g1_epilogue(a, vm, rnd, types, uid, s_strip):
    RB = rnd * 65536
    EX = RB; STP = RB + 32768; CSP = RB + 36864
    ftiles = [nt for nt in range(4) if types[nt >> 1] == 'F']
    a('s_barrier')
    a('s_lshl_b32 s52, s41, 1')
    a('s_add_u32 s53, s52, s42')
    a('s_xor_b32 s52, s53, 1')
    a('s_lshl_b32 s52, s52, 12'); a('s_lshl_b32 s53, s53, 12')
    a('s_add_u32 s52, s52, %d' % EX); a('s_add_u32 s53, s53, %d' % EX)
    a('v_add_u32 v10, s52, v%d' % VL16)
    a('v_add_u32 v11, s53, v%d' % VL16)
    if ftiles:
        a('s_lshl_b32 s52, s3, 6')
        a('s_add_u32 s52, s52, %d' % CSP)
        a('v_lshl_add_u32 v12, v4, 4, s52')
        a('s_mov_b64 exec, s[56:57]')
        for nt in ftiles:
            a('ds_write_b128 v12, %s offset:%d' % (V(CS + 4 * nt, 4), nt * 512))
        a('s_mov_b64 exec, -1')
    if rnd == 0:
        a('s_lshl_b32 s52, s3, 8')
        a('s_add_u32 s52, s52, %d' % STP)
        a('v_lshl_add_u32 v12, v3, 3, s52')
        for t in range(2):
            a('v_cndmask_b32 v15, v%d, v%d, s[58:59]' % (GG + 4 * t, GG + 4 * t + 1))
            a('v_cndmask_b32 v15, v15, v%d, s[60:61]' % (GG + 4 * t + 2))
            a('v_cndmask_b32 v15, v15, v%d, s[62:63]' % (GG + 4 * t + 3))
            a('v_mov_b32 v14, v%d' % (SS + 4 * t))
            a('s_mov_b64 exec, s[64:65]')
            a('ds_write_b64 v12, v[14:15] offset:%d' % (t * 128))
            a('s_mov_b64 exec, -1')
    a('s_cmp_eq_u32 s42, 0')
    a('s_cbranch_scc0 L_ep1_%s' % uid)
    for kh in range(2):
        if kh == 1: a.label('L_ep1_%s' % uid)
        vmk = vm.clone()
        send = [2, 3] if kh == 0 else [0, 1]
        keep = [0, 1] if kh == 0 else [2, 3]
        for z, nt in enumerate(send):
            for t in range(2):
                a('ds_write_b128 v10, %s offset:%d' % (acc(nt, t), (z * 2 + t) * 1024))
        a('s_waitcnt lgkmcnt(0)')
        a('s_barrier')
        for z in range(4):
            a('ds_read_b128 %s, v11 offset:%d' % (V(16 + 4 * z, 4), z * 1024))
        if rnd == 0:
            a('s_lshl_b32 s52, s41, 8')
            a('s_add_u32 s52, s52, %d' % STP)
            a('v_lshl_add_u32 v12, v3, 3, s52')
            for t in range(2):
                a('ds_read_b64 v[%d:%d], v12 offset:%d' % (32 + 4 * t, 33 + 4 * t, t * 128))
                a('ds_read_b64 v[%d:%d], v12 offset:%d' % (34 + 4 * t, 35 + 4 * t, t * 128 + 1024))
        ty = types[kh]
        if ty == 'F':
            a('v_lshlrev_b32 v12, 6, v3')
            a('v_lshl_add_u32 v12, v4, 4, v12')
            a('v_add_u32 v12, %d, v12' % (CSP + keep[0] * 512))
            a('ds_read_b128 v[40:43], v12')
        a('s_waitcnt lgkmcnt(0)')
        for z, nt in enumerate(keep):
            for t in range(2):
                for r in range(4):
                    a('v_add_f32 v%d, v%d, v%d' % (accn(nt, t) + r, accn(nt, t) + r, 16 + (z * 2 + t) * 4 + r))
        if rnd == 0:
            for t in range(2):
                s0, q0, s1, q1 = 32 + 4 * t, 33 + 4 * t, 34 + 4 * t, 35 + 4 * t
                a('v_add_f32 v%d, v%d, v%d' % (s0, s0, s1))
                a('v_add_f32 v%d, v%d, v%d' % (q0, q0, q1))
                a('v_mul_f32 v%d, %s, v%d' % (s0, fl(1 / 512), s0))
                a('v_mul_f32 v%d, %s, v%d' % (q0, fl(1 / 512), q0))
                a('v_fma_f32 v%d, -v%d, v%d, v%d' % (q0, s0, s0, q0))
                a('v_max_f32 v%d, 0, v%d' % (q0, q0))
                rbf16(a, 'v%d' % s0, 'v%d' % s1)
                rbf16(a, 'v%d' % q0, 'v%d' % q1)
                a('v_add_f32 v%d, %s, v%d' % (q0, fl(1e-5), q0))
                rbf16(a, 'v%d' % q0, 'v%d' % q1)
                a('v_sqrt_f32 v%d, v%d' % (q0, q0))
                rbf16(a, 'v%d' % q0, 'v%d' % q1)
                a('v_rcp_f32 v%d, v%d' % (ST + 2 + t, q0))
                a('v_mov_b32 v%d, v%d' % (ST + t, s0))
                a('v_mul_f32 v%d, %s, v%d' % (ST + 4 + t, fl(-1.4426950408889634), ST + 2 + t))
        if ty == 'F':
            for mod in ('quad_perm:[1,0,3,2]', 'quad_perm:[2,3,0,1]', 'row_half_mirror'):
                for r in range(4):
                    a('v_add_f32_dpp v%d, v%d, v%d %s row_mask:0xf bank_mask:0xf' % (40 + r, 40 + r, 40 + r, mod))
            for r in range(4):
                a('v_mov_b32_dpp v%d, v%d row_ror:8 row_mask:0xf bank_mask:0xf' % (44 + r, 40 + r))
            for r in range(4):
                a('v_cndmask_b32 v%d, v%d, v%d, s[66:67]' % (48 + r, 44 + r, 40 + r))
                a('v_cndmask_b32 v%d, v%d, v%d, s[66:67]' % (52 + r, 40 + r, 44 + r))
            a('s_lshl_b32 s52, s45, 1')
            a('s_mul_i32 s52, s52, 43')
            a('s_add_u32 s52, s52, %s' % s_strip[kh])
            a('s_lshl_b32 s52, s52, 10')
            a('s_add_u32 s53, s52, %d' % (43 * 1024))
            for t in range(2):
                for z, nt in enumerate(keep):
                    for r in range(4):
                        x_ = accn(nt, t) + r
                        e_ = 16 + z * 4 + r
                        a('v_fma_f32 v%d, -v%d, v%d, v%d' % (x_, ST + t, 48 + z * 4 + r, x_))
                        a('v_mul_f32 v%d, v%d, v%d' % (e_, x_, ST + 4 + t))
                        a('v_exp_f32 v%d, v%d' % (e_, e_))
                        a('v_mul_f32 v%d, v%d, v%d' % (x_, x_, ST + 2 + t))
                        a('v_add_f32 v%d, 1.0, v%d' % (e_, e_))
                        a('v_rcp_f32 v%d, v%d' % (e_, e_))
                    for r in range(4):
                        x_ = accn(nt, t) + r; e_ = 16 + z * 4 + r
                        a('v_mul_f32 v%d, v%d, v%d' % (x_, x_, e_))
                    a('v_cvt_pk_bf16_f32 v%d, v%d, v%d' % (24 + 4 * t + z * 2, accn(nt, t), accn(nt, t) + 1))
                    a('v_cvt_pk_bf16_f32 v%d, v%d, v%d' % (25 + 4 * t + z * 2, accn(nt, t) + 2, accn(nt, t) + 3))
                a('buffer_store_dwordx4 %s, v%d, %s, s%d offen' % (V(24 + 4 * t, 4), VL16, srd(S_WS), 52 + t))
        else:
            a('s_lshl_b32 s52, s3, 8')
            a('s_add_u32 s52, s52, %d' % 131072)
            a('v_lshl_add_u32 v12, v3, 2, s52')
            a('v_lshl_add_u32 v13, v4, 4, s52')
            for t in range(2):
                a('ds_write_b32 v12, v%d offset:%d' % (ST + t, t * 64))
                a('ds_write_b32 v12, v%d offset:%d' % (ST + 2 + t, 128 + t * 64))
            a('s_waitcnt lgkmcnt(0)')
            for t in range(2):
                a('ds_read_b128 %s, v13 offset:%d' % (V(16 + 4 * t, 4), t * 64))
                a('ds_read_b128 %s, v13 offset:%d' % (V(24 + 4 * t, 4), 128 + t * 64))
            a('s_cmp_eq_u32 %s, 0' % s_strip[kh])
            a('s_cselect_b32 s52, %s, 0' % fl(512.0))
            a('v_mov_b32 v32, 0')
            a('v_mov_b32 v33, s52')
            a('v_cndmask_b32 v32, v32, v33, s[56:57]')
            a('s_waitcnt lgkmcnt(0)')
            re_, im_ = keep
            for t in range(2):
                for r in range(4):
                    x_ = accn(re_, t) + r; y_ = accn(im_, t) + r
                    a('v_fma_f32 v%d, -v%d, v32, v%d' % (x_, 16 + 4 * t + r, x_))
                    a('v_mul_f32 v%d, v%d, v%d' % (y_, y_, 24 + 4 * t + r))
                    a('v_mul_f32 v%d, v%d, v%d' % (x_, x_, 24 + 4 * t + r))
            for t in range(2):
                for p in range(2):
                    x_ = accn(re_, t) + 2 * p; y_ = accn(im_, t) + 2 * p
                    a('v_cvt_pk_bf16_f32 v%d, v%d, v%d' % (36 + 2 * t + p, x_, x_ + 1))
                    a('v_cvt_pk_bf16_f32 v%d, v%d, v%d' % (40 + 2 * t + p, y_, y_ + 1))
                    a('v_cvt_pk_bf16_f32 v%d, -v%d, -v%d' % (44 + 2 * t + p, x_, x_ + 1))
            for i in range(2):
                Mc = V(MF + 4 * i, 4); Ms = V(MF + 8 + 4 * i, 4)
                a('v_mfma_f32_16x16x32_bf16 %s, v[36:39], %s, 0' % (V(16 + 8 * i, 4), Mc))
                a('v_mfma_f32_16x16x32_bf16 %s, v[40:43], %s, 0' % (V(20 + 8 * i, 4), Mc))
            for i in range(2):
                Mc = V(MF + 4 * i, 4); Ms = V(MF + 8 + 4 * i, 4)
                a('v_mfma_f32_16x16x32_bf16 %s, v[40:43], %s, %s' % (V(16 + 8 * i, 4), Ms, V(16 + 8 * i, 4)))
                a('v_mfma_f32_16x16x32_bf16 %s, v[44:47], %s, %s' % (V(20 + 8 * i, 4), Ms, V(20 + 8 * i, 4)))
            a('s_lshl_b32 s52, %s, 17' % s_strip[kh])
            a('s_lshl_b32 s53, s45, 6')
            a('s_add_u32 s52, s52, s53')
            a('s_add_u32 s52, s52, %d' % AB_OFF)
            a('s_add_u32 s53, s52, %d' % (16 * 4096))
            a('v_lshlrev_b32 v12, 12, v3')
            a('v_lshl_add_u32 v12, v4, 4, v12')
            for i in range(2):
                for p in range(4):
                    a('v_cvt_pk_bf16_f32 v%d, v%d, v%d' % (48 + 4 * i + p, 16 + 8 * i + 2 * p, 17 + 8 * i + 2 * p))
                a('buffer_store_dwordx4 %s, v12, %s, s%d offen' % (V(48 + 4 * i, 4), srd(S_WS), 52 + i))
        if kh == 0:
            a('s_branch L_epd_%s' % uid)
    a.label('L_epd_%s' % uid)
    vm.issue('st'); vm.issue('st')

def gen_g1(a):
    a.raw('.globl g1_kernel\n.p2align 8\n.type g1_kernel,@function\ng1_kernel:')
    prologue(a, 256, 'L_g1_end')
    a('s_and_b32 s41, s3, 3')
    a('s_lshr_b32 s42, s3, 2')
    a('s_and_b32 s52, s2, 7')
    a('s_lshr_b32 s53, s2, 3')
    a('s_lshr_b32 s43, s52, 1'); a('s_lshl_b32 s43, s43, 2'); a('s_and_b32 s54, s53, 3'); a('s_add_u32 s43, s43, s54')
    a('s_and_b32 s44, s52, 1'); a('s_lshl_b32 s44, s44, 3'); a('s_lshr_b32 s54, s53, 2'); a('s_add_u32 s44, s44, s54')
    a('s_lshl_b32 s45, s43, 2'); a('s_add_u32 s45, s45, s41')
    a('v_lshlrev_b32 v%d, 4, v2' % VL16)
    a('s_lshl_b32 s52, s45, 10'); a('s_lshl_b32 s53, s42, 9'); a('s_add_u32 s52, s52, s53')
    a('v_lshlrev_b32 v%d, 16, v3' % VXO)
    a('v_lshl_add_u32 v%d, v4, 4, v%d' % (VXO, VXO))
    a('v_add_u32 v%d, s52, v%d' % (VXO, VXO))
    a('s_mov_b32 s46, 0x100000')
    a('v_lshrrev_b32 v10, 2, v2')
    a('v_and_b32 v11, 3, v2')
    a('v_lshrrev_b32 v12, 4, v2'); a('v_and_b32 v12, 2, v12')
    a('v_xor_b32 v11, v11, v12')
    a('s_lshl_b32 s52, s42, 8'); a('s_lshl_b32 s53, s41, 4'); a('s_add_u32 s47, s52, s53')
    a('v_add_u32 v10, s47, v10')
    a('s_mov_b32 s52, 2752')
    a('v_mul_lo_u32 v10, v10, s52')
    a('v_lshl_add_u32 v%d, v11, 4, v10' % VWO)
    a('s_lshl_b32 s47, s47, 6')
    a('s_mov_b32 s70, s44')
    a('s_mov_b32 s71, s44')
    a('s_lshl_b32 s72, s44, 1'); a('s_add_u32 s72, s72, 15'); a('s_add_u32 s73, s72, 1')
    a('v_lshrrev_b32 v10, 2, v3')
    a('v_and_b32 v11, 3, v2')
    a('v_lshl_add_u32 v10, v4, 3, v10')
    a('s_lshl_b32 s52, s42, 8')
    a('v_add_u32 v10, s52, v10')
    a('v_lshlrev_b32 v10, 6, v10')
    a('v_lshrrev_b32 v12, 1, v11')
    a('v_and_b32 v13, 1, v4'); a('v_lshlrev_b32 v13, 1, v13')
    a('v_xor_b32 v12, v12, v13')
    a('v_lshl_add_u32 v10, v12, 4, v10')
    a('v_and_b32 v11, 1, v11')
    a('v_lshl_add_u32 v%d, v11, 3, v10' % VTR0)
    a('v_xor_b32 v%d, 32, v%d' % (VTR1, VTR0))
    a('v_cmp_eq_u32 s[56:57], 0, v3')
    a('v_and_b32 v10, 3, v3')
    a('v_cmp_eq_u32 s[58:59], 1, v10'); a('v_cmp_eq_u32 s[60:61], 2, v10'); a('v_cmp_eq_u32 s[62:63], 3, v10')
    a('v_lshrrev_b32 v10, 2, v3')
    a('v_cmp_eq_u32 s[64:65], v10, v4')
    a('v_cmp_gt_u32 s[66:67], 8, v3')
    for r in range(4): a('v_mov_b32 v%d, 0x3f803f80' % (ONES + r))
    a('s_cmp_eq_u32 s44, 15'); a('s_cbranch_scc1 L_g1_t2')
    a('s_cmp_eq_u32 s44, 14'); a('s_cbranch_scc1 L_g1_t1')
    for typ in range(3):
        uid = 't%d' % typ
        if typ: a.label('L_g1_%s' % uid)
        vm = VM(a)
        r0 = ('S', 'S') if typ == 2 else ('S', 'F')
        def dma(strip_s, SB, c, tag):
            a('s_lshl_b32 s52, %s, 6' % strip_s)
            if c: a('s_add_u32 s52, s52, %d' % (c * 64 * 2752))
            a('s_add_u32 m0, s47, %d' % (SB + c * 4096))
            a('buffer_load_dwordx4 v%d, %s, s52 offen lds' % (VWO, srd(S_W1)))
            vm.issue(tag)
        for c in range(4):
            for kk in (2 * c, 2 * c + 1):
                for t in range(2):
                    a('buffer_load_dwordx4 %s, v%d, %s, %s offen offset:%d' % (xf(t, kk), VXO, srd(S_X), 's46' if t else '0', 64 * kk))
                    vm.issue(('r0', c))
            if r0[1] == 'F': dma('s71', 32768, c, ('r0', c))
        if typ == 0:
            for c in range(4):
                dma('s72', 65536, c, ('r1', c)); dma('s73', 65536 + 32768, c, ('r1', c))
        if typ == 2: a('s_mov_b32 s71, 16')
        gen_spec_strip(a, 0, 's70', uid + 'a')
        if typ == 2: gen_spec_strip(a, 32768, 's71', uid + 'b')
        def mfr():
            for i in range(2):
                a('v_add_u32 v10, %d, v3' % (16 * i))
                a('v_lshl_add_u32 v11, v4, 8, s45')
                a('v_mul_u32_u24 v11, v10, v11')
                a('v_and_b32 v11, 2047, v11')
                a('v_cvt_f32_u32 v11, v11')
                a('v_cvt_f32_u32 v10, v10')
                a('v_mul_f32 v11, %s, v11' % fl(1 / 2048))
                a('v_mul_f32 v10, %s, v10' % fl(1 / 32))
                for j in range(8):
                    jj = (j & 3) + 16 * (j >> 2)
                    if jj: a('v_fmamk_f32 v12, v10, %s, v11' % fl(float(jj)))
                    else: a('v_mov_b32 v12, v11')
                    a('v_fract_f32 v12, v12')
                    a('v_cos_f32 v%d, v12' % (16 + j))
                    a('v_sin_f32 v%d, v12' % (24 + j))
                for p in range(4):
                    a('v_cvt_pk_bf16_f32 v%d, v%d, v%d' % (MF + 4 * i + p, 16 + 2 * p, 17 + 2 * p))
                    a('v_cvt_pk_bf16_f32 v%d, v%d, v%d' % (MF + 8 + 4 * i + p, 24 + 2 * p, 25 + 2 * p))
        mfr()
        for r in range(16): a('v_mov_b32 v%d, 0' % (CS + r))
        g1_round(a, vm, 0, r0, uid + 'r0', lambda c: {('r0', c)})
        g1_epilogue(a, vm, 0, r0, uid + 'r0', ['s70', 's71'])
        if typ == 0:
            a('v_add_u32 v%d, 0x10000, v%d' % (VTR0, VTR0))
            a('v_add_u32 v%d, 0x10000, v%d' % (VTR1, VTR1))
            for r in range(16): a('v_mov_b32 v%d, 0' % (CS + r))
            g1_round(a, vm, 1, ('F', 'F'), uid + 'r1', lambda c: {('r1', c)})
            g1_epilogue(a, vm, 1, ('F', 'F'), uid + 'r1', ['s72', 's73'])
        a('s_endpgm')
    a.label('L_g1_end')
    a('s_endpgm')

def gen_p2(a):
    a.raw('.globl p2_kernel\n.p2align 8\n.type p2_kernel,@function\np2_kernel:')
    prologue(a, 256, 'L_p2_end')
    a('v_lshlrev_b32 v%d, 4, v2' % VL16)
    a('s_lshl_b32 s40, s3, 8'); a('s_add_u32 s40, s40, s2')
    a('s_lshr_b32 s41, s40, 5')
    a('s_and_b32 s42, s40, 31')
    a('s_cmp_lt_u32 s40, 544')
    a('s_cselect_b32 s43, 1, 0')
    a('s_cmp_lt_u32 s3, 3')
    a('s_cselect_b32 s43, s43, 0')
    a('s_cmp_eq_u32 s43, 0')
    a('s_cbranch_scc1 L_p2_tab')
    a('s_lshl_b32 s52, s40, 12'); a('s_add_u32 s52, s52, %d' % AB_OFF)
    a('s_lshl_b32 s44, s3, 12'); a('s_add_u32 s44, s44, 16384')
    for z in range(4):
        a('s_add_u32 m0, s44, 0')
        a('buffer_load_dwordx4 v%d, %s, s52 offen offset:%d lds' % (VL16, srd(S_WS), z * 1024))
    a('s_lshl_b32 s52, s41, 5')
    a('s_sub_u32 s53, s52, %d' % (9 * 32 - 1))
    a('s_cmp_lt_u32 s41, 9')
    a('s_cselect_b32 s52, s52, s53')
    a('v_lshl_add_u32 v10, v3, 1, s52')
    a('v_lshl_add_u32 v11, v4, 7, s42')
    a('s_mov_b32 s53, 514')
    a('v_mul_lo_u32 v11, v11, s53')
    a('v_lshl_add_u32 v11, v10, 1, v11')
    a('v_mov_b32 v12, 0x40000000')
    a('v_cmp_lt_u32 vcc, 256, v10')
    a('v_cndmask_b32 v11, v11, v12, vcc')
    for i in range(4):
        for r in range(4):
            a('s_mov_b32 s52, %d' % ((512 * i + 32 * r) * 514))
            a('buffer_load_ushort v%d, v11, %s, s52 offen' % (160 + 4 * i + r, srd(S_WR)))
            a('buffer_load_ushort v%d, v11, %s, s52 offen' % (208 + 4 * i + r, srd(S_WI)))
    a.label('L_p2_tab')
    a('s_lshr_b32 s52, s3, 1'); a('s_lshl_b32 s52, s52, 4')
    a('s_and_b32 s53, s3, 1'); a('s_lshl_b32 s53, s53, 5')
    a('v_add_u32 v10, s52, v3')
    a('v_lshl_add_u32 v11, v4, 2, s53')
    a('v_mul_u32_u24 v11, v10, v11')
    a('v_and_b32 v11, 63, v11')
    a('v_cvt_f32_u32 v11, v11'); a('v_cvt_f32_u32 v10, v10')
    a('v_mul_f32 v11, %s, v11' % fl(1 / 64)); a('v_mul_f32 v10, %s, v10' % fl(1 / 64))
    for j in range(8):
        jj = (j & 3) + 16 * (j >> 2)
        if jj: a('v_fmamk_f32 v12, v10, %s, v11' % fl(float(jj)))
        else: a('v_mov_b32 v12, v11')
        a('v_fract_f32 v12, v12')
        a('v_cos_f32 v%d, v12' % (16 + j)); a('v_sin_f32 v%d, v12' % (24 + j))
    for p in range(4):
        a('v_cvt_pk_bf16_f32 v%d, v%d, v%d' % (32 + p, 16 + 2 * p, 17 + 2 * p))
        a('v_cvt_pk_bf16_f32 v%d, v%d, v%d' % (36 + p, 24 + 2 * p, 25 + 2 * p))
    a('v_lshlrev_b32 v10, 4, v0')
    a('ds_write_b128 v10, v[32:35]')
    a('ds_write_b128 v10, v[36:39] offset:8192')
    a('s_waitcnt lgkmcnt(0)')
    a('s_barrier')
    a('s_cmp_eq_u32 s43, 0')
    a('s_cbranch_scc1 L_p2_end')
    CF, SF = 64, 96
    for fi in range(8):
        a('ds_read_b128 %s, v%d offset:%d' % (V(CF + 4 * fi, 4), VL16, fi * 1024))
    a('s_waitcnt lgkmcnt(4)')
    for fi in range(8):
        a('ds_read_b128 %s, v%d offset:%d' % (V(SF + 4 * fi, 4), VL16, 8192 + fi * 1024))
    a('v_lshrrev_b32 v10, 2, v3')
    a('v_lshl_add_u32 v10, v4, 2, v10')
    a('v_lshlrev_b32 v10, 6, v10')
    a('v_and_b32 v11, 3, v2')
    a('v_lshl_add_u32 v10, v11, 4, v10')
    a('v_add_u32 v10, s44, v10')
    a('s_waitcnt vmcnt(32) lgkmcnt(0)')
    AR, AI, NAR = 16, 24, 32
    for ks in range(2):
        for h2 in range(2):
            a('ds_read_b64_tr_b16 %s, v10 offset:%d' % (V(AR + 4 * ks + 2 * h2, 2), ks * 2048 + h2 * 1024))
            a('ds_read_b64_tr_b16 %s, v10 offset:%d' % (V(AI + 4 * ks + 2 * h2, 2), ks * 2048 + h2 * 1024 + 8))
    a('s_waitcnt lgkmcnt(0)')
    for p in range(8): a('v_xor_b32 v%d, 0x80008000, v%d' % (NAR + p, AR + p))
    XR, XI = 128, 144
    def C(i, ks): return V(CF + (i * 2 + ks) * 4, 4)
    def S(i, ks): return V(SF + (i * 2 + ks) * 4, 4)
    for ks in range(2):
        for i in range(4):
            a('v_mfma_f32_16x16x32_bf16 %s, %s, %s, %s' % (V(XR + 4 * i, 4), C(i, ks), V(AR + 4 * ks, 4), '0' if ks == 0 else V(XR + 4 * i, 4)))
            a('v_mfma_f32_16x16x32_bf16 %s, %s, %s, %s' % (V(XI + 4 * i, 4), C(i, ks), V(AI + 4 * ks, 4), '0' if ks == 0 else V(XI + 4 * i, 4)))
        for i in range(4):
            a('v_mfma_f32_16x16x32_bf16 %s, %s, %s, %s' % (V(XR + 4 * i, 4), S(i, ks), V(AI + 4 * ks, 4), V(XR + 4 * i, 4)))
            a('v_mfma_f32_16x16x32_bf16 %s, %s, %s, %s' % (V(XI + 4 * i, 4), S(i, ks), V(NAR + 4 * ks, 4), V(XI + 4 * i, 4)))
    a('s_waitcnt vmcnt(0)')
    for e in range(16):
        a('v_lshlrev_b32 v40, 16, v%d' % (160 + e))
        a('v_lshlrev_b32 v41, 16, v%d' % (208 + e))
        a('v_mul_f32 v%d, v%d, v40' % (176 + e, XR + e))
        a('v_mul_f32 v%d, v%d, v41' % (192 + e, XR + e))
        a('v_fma_f32 v%d, -v%d, v41, v%d' % (176 + e, XI + e, 176 + e))
        a('v_fma_f32 v%d, v%d, v40, v%d' % (192 + e, XI + e, 192 + e))
    VR, VI, NVI = 16, 24, 32
    for p in range(8):
        a('v_cvt_pk_bf16_f32 v%d, v%d, v%d' % (VR + p, 176 + 2 * p, 177 + 2 * p))
        a('v_cvt_pk_bf16_f32 v%d, v%d, v%d' % (VI + p, 192 + 2 * p, 193 + 2 * p))
        a('v_cvt_pk_bf16_f32 v%d, -v%d, -v%d' % (NVI + p, 192 + 2 * p, 193 + 2 * p))
    DR, DI = 128, 144
    for ks in range(2):
        for i in range(4):
            a('v_mfma_f32_16x16x32_bf16 %s, %s, %s, %s' % (V(DR + 4 * i, 4), V(VR + 4 * ks, 4), C(i, ks), '0' if ks == 0 else V(DR + 4 * i, 4)))
            a('v_mfma_f32_16x16x32_bf16 %s, %s, %s, %s' % (V(DI + 4 * i, 4), V(VI + 4 * ks, 4), C(i, ks), '0' if ks == 0 else V(DI + 4 * i, 4)))
        for i in range(4):
            a('v_mfma_f32_16x16x32_bf16 %s, %s, %s, %s' % (V(DR + 4 * i, 4), V(NVI + 4 * ks, 4), S(i, ks), V(DR + 4 * i, 4)))
            a('v_mfma_f32_16x16x32_bf16 %s, %s, %s, %s' % (V(DI + 4 * i, 4), V(VR + 4 * ks, 4), S(i, ks), V(DI + 4 * i, 4)))
    a('s_lshl_b32 s52, s40, 6')
    a('s_add_u32 s52, s52, %d' % DB_OFF)
    a('s_mov_b32 s53, %d' % (17 * 2048))
    a('v_mul_lo_u32 v10, v3, s53')
    a('v_lshl_add_u32 v10, v4, 4, v10')
    for i in range(4):
        for p in range(2):
            a('v_cvt_pk_bf16_f32 v%d, v%d, v%d' % (40 + 4 * i + p, DR + 4 * i + 2 * p, DR + 4 * i + 2 * p + 1))
            a('v_cvt_pk_bf16_f32 v%d, v%d, v%d' % (42 + 4 * i + p, DI + 4 * i + 2 * p, DI + 4 * i + 2 * p + 1))
        a('buffer_store_dwordx4 %s, v10, %s, s52 offen' % (V(40 + 4 * i, 4), srd(S_WS)))
        if i < 3: a('s_add_u32 s52, s52, %d' % (16 * 17 * 2048))
    a.label('L_p2_end')
    a('s_endpgm')

SLOTPOS = {2: 0, 3: 1, 4: 2, 5: 3, 6: 4, 0: 5, 1: 6}
def slot_base(c): return SLOTPOS[c % 7] * 16384
DBASE = 32768
GB = 114688
def gen_g2(a):
    a.raw('.globl g2_kernel\n.p2align 8\n.type g2_kernel,@function\ng2_kernel:')
    prologue(a, 256, 'L_g2_end')
    vm = VM(a)
    HFR = 64
    AC = 152
    EO = 168
    AF = 176
    MC, MS, NMS = 208, 212, 216
    XV = 220
    TB = 224
    a('v_lshlrev_b32 v%d, 4, v2' % VL16)
    a('s_and_b32 s41, s3, 3')
    a('s_lshr_b32 s42, s3, 2')
    a('s_and_b32 s52, s2, 7'); a('s_lshr_b32 s53, s2, 3')
    a('s_lshl_b32 s43, s52, 2'); a('s_and_b32 s54, s53, 3'); a('s_add_u32 s43, s43, s54')
    a('s_lshr_b32 s44, s53, 2')
    a('s_lshl_b32 s45, s43, 1'); a('s_lshr_b32 s54, s41, 1'); a('s_add_u32 s45, s45, s54')
    a('s_and_b32 s46, s41, 1')
    a('s_lshl_b32 s47, s45, 1'); a('s_add_u32 s47, s47, s46'); a('s_mul_i32 s47, s47, 43'); a('s_add_u32 s47, s47, s42'); a('s_lshl_b32 s47, s47, 10')
    a('v_lshrrev_b32 v10, 3, v2')
    a('v_and_b32 v11, 7, v2')
    a('v_and_b32 v12, 6, v10')
    a('v_xor_b32 v11, v11, v12')
    a('s_lshl_b32 s52, s3, 4')
    a('v_add_u32 v10, s52, v10')
    a('v_lshlrev_b32 v10, 10, v10')
    a('v_lshrrev_b32 v12, 2, v11')
    a('v_lshl_add_u32 v10, v12, 9, v10')
    a('v_and_b32 v12, 3, v11')
    a('v_lshl_add_u32 v10, v12, 4, v10')
    a('s_lshl_b32 s52, s44, 6')
    a('v_add_u32 v%d, s52, v10' % VWO)
    a('s_lshl_b32 s48, s3, 11')
    def dma_w2(c):
        for z in range(2):
            a('s_mov_b32 s52, %d' % ((128 * c + 8 * z) * 1024))
            a('s_add_u32 m0, s48, %d' % (slot_base(c) + z * 1024))
            a('buffer_load_dwordx4 v%d, %s, s52 offen lds' % (VWO, srd(S_W2)))
            vm.issue(('c', c))
    def ldh(i):
        a('s_add_u32 s52, s47, %d' % (2048 * i))
        a('buffer_load_dwordx4 %s, v%d, %s, s52 offen' % (V(HFR + 4 * i, 4), VL16, srd(S_WS)))
        vm.issue(('c', i // 2))
    for c in range(7):
        dma_w2(c); ldh(2 * c); ldh(2 * c + 1)
    for i in range(14, 22): ldh(i)
    a('s_lshl_b32 s52, s46, 20'); a('s_lshl_b32 s53, s45, 10'); a('s_add_u32 s52, s52, s53')
    a('s_lshl_b32 s53, s44, 6'); a('s_add_u32 s52, s52, s53'); a('s_lshl_b32 s53, s42, 9'); a('s_add_u32 s52, s52, s53')
    a('v_lshlrev_b32 v%d, 16, v3' % VXO)
    a('v_lshl_add_u32 v%d, v4, 3, v%d' % (VXO, VXO))
    a('v_add_u32 v%d, s52, v%d' % (VXO, VXO))
    for i in range(2):
        a('buffer_load_dwordx2 %s, v%d, %s, 0 offen offset:%d' % (V(XV + 2 * i, 2), VXO, srd(S_X), 32 * i))
        vm.issue('x')
    a('v_lshrrev_b32 v10, 2, v3')
    a('v_lshl_add_u32 v10, v4, 2, v10')
    a('v_and_b32 v11, 6, v10')
    a('v_and_b32 v12, 3, v2')
    a('v_lshrrev_b32 v13, 1, v12')
    a('v_xor_b32 v11, v11, v13')
    a('v_and_b32 v12, 1, v12')
    a('v_lshlrev_b32 v10, 7, v10')
    a('v_lshl_add_u32 v10, v12, 3, v10')
    a('s_lshl_b32 s52, s42, 12')
    a('v_add_u32 v10, s52, v10')
    for mt in range(4):
        a('v_xor_b32 v12, %d, v11' % (2 * mt))
        a('v_lshl_add_u32 v%d, v12, 4, v10' % (TB + mt))
        a('v_add_u32 v%d, 0x10000, v%d' % (TB + 4 + mt, TB + mt))
    a('s_lshl_b32 s52, s46, 10'); a('s_add_u32 s52, s52, s45')
    a('v_lshl_add_u32 v10, v3, 6, s52')
    a('v_lshlrev_b32 v11, 3, v4')
    a('v_mul_u32_u24 v11, v10, v11')
    a('v_and_b32 v11, 2047, v11')
    a('v_cvt_f32_u32 v11, v11'); a('v_cvt_f32_u32 v10, v10')
    a('v_mul_f32 v11, %s, v11' % fl(1 / 2048)); a('v_mul_f32 v10, %s, v10' % fl(1 / 2048))
    for j in range(8):
        if j:
            a('v_add_f32 v11, v11, v10')
            a('v_fract_f32 v11, v11')
        a('v_cos_f32 v%d, v11' % (16 + j)); a('v_sin_f32 v%d, v11' % (24 + j))
    for p in range(4):
        a('v_cvt_pk_bf16_f32 v%d, v%d, v%d' % (MC + p, 16 + 2 * p, 17 + 2 * p))
        a('v_cvt_pk_bf16_f32 v%d, v%d, v%d' % (MS + p, 24 + 2 * p, 25 + 2 * p))
        a('v_cvt_pk_bf16_f32 v%d, -v%d, -v%d' % (NMS + p, 24 + 2 * p, 25 + 2 * p))
    a('v_cmp_eq_u32 s[56:57], 0, v4')
    for ps in range(5):
        lab = 'L_g2_gt%d' % ps
        a('s_add_u32 s50, s3, %d' % (8 * ps))
        def body():
            a('s_lshr_b32 s51, s50, 1')
            a('s_and_b32 s52, s50, 1'); a('s_lshl_b32 s52, s52, 4'); a('s_lshl_b32 s53, s44, 5'); a('s_add_u32 s52, s52, s53')
            a('v_add_u32 v10, s52, v3')
            a('s_lshl_b32 s52, s51, 5'); a('s_sub_u32 s53, s52, %d' % (9 * 32 - 1))
            a('s_cmp_lt_u32 s51, 9'); a('s_cselect_b32 s52, s52, s53')
            a('v_lshl_add_u32 v11, v4, 3, s52')
            a('v_mul_u32_u24 v11, v10, v11')
            a('v_and_b32 v11, 511, v11')
            a('v_cvt_f32_u32 v11, v11'); a('v_cvt_f32_u32 v10, v10')
            a('v_mul_f32 v11, %s, v11' % fl(1 / 512)); a('v_mul_f32 v10, %s, v10' % fl(1 / 256))
            a('s_cmp_eq_u32 s51, 8'); a('s_cselect_b32 s52, 0, %s' % fl(2.0 ** -19))
            a('s_and_b32 s53, s51, 7'); a('s_cmp_lt_u32 s51, 9'); a('s_cselect_b32 s53, s53, 1')
            a('s_mov_b32 s54, %s' % fl(2.0 ** -19)); a('s_cmp_eq_u32 s53, 0'); a('s_cselect_b32 s53, %s, s54' % fl(2.0 ** -20))
            a('v_mov_b32 v12, s52'); a('v_mov_b32 v13, s53')
            a('v_cndmask_b32 v13, v12, v13, s[56:57]')
            for j in range(4):
                if j:
                    a('v_add_f32 v11, v11, v10')
                    a('v_fract_f32 v11, v11')
                a('v_cos_f32 v%d, v11' % (16 + j)); a('v_sin_f32 v%d, v11' % (20 + j))
            for j in range(4):
                a('v_mul_f32 v%d, v%d, v%d' % (16 + j, 16 + j, 13 if j == 0 else 12))
                a('v_mul_f32 v%d, v%d, v%d' % (20 + j, 20 + j, 13 if j == 0 else 12))
            a('v_cvt_pk_bf16_f32 v24, v16, v17'); a('v_cvt_pk_bf16_f32 v25, v18, v19')
            a('v_cvt_pk_bf16_f32 v26, -v20, -v21'); a('v_cvt_pk_bf16_f32 v27, -v22, -v23')
            a('s_lshl_b32 s52, s50, 10'); a('s_add_u32 s52, s52, %d' % GB)
            a('v_add_u32 v10, s52, v%d' % VL16)
            a('ds_write_b128 v10, v[24:27]')
        if ps == 4:
            a('s_cmp_lt_u32 s50, 34')
            a('s_cbranch_scc0 %s' % lab)
            body()
            a.label(lab)
        else:
            body()
    a('s_mul_i32 s49, s43, %d' % (2 * 17 * 2048)); a('s_add_u32 s49, s49, %d' % DB_OFF); a('s_add_u32 s49, s49, s48')
    def dma_d(p):
        if p < 4:
            for z in range(2):
                a('s_add_u32 s52, s49, %d' % (p * 16384 + z * 1024))
                a('s_add_u32 m0, s48, %d' % (DBASE + p * 16384 + z * 1024))
                a('buffer_load_dwordx4 v%d, %s, s52 offen lds' % (VL16, srd(S_WS)))
                vm.issue(('d', p))
        else:
            a('s_sub_u32 s52, s49, s48'); a('s_lshl_b32 s53, s41, 10'); a('s_add_u32 s52, s52, s53'); a('s_add_u32 s52, s52, 65536')
            a('s_add_u32 m0, s53, %d' % (DBASE + 65536))
            a('buffer_load_dwordx4 v%d, %s, s52 offen lds' % (VL16, srd(S_WS)))
            vm.issue(('d', p))
    def reads(i):
        c, z = i >> 1, i & 1
        off = slot_base(c) + z * 8192
        hi = 0
        if off >= 65536 - 4096: off -= 65536; hi = 4
        assert 0 <= off and off + 2048 < 65536, off
        for mt in range(4):
            for h2 in range(2):
                a('ds_read_b64_tr_b16 %s, v%d offset:%d' % (V(AF + (i & 1) * 16 + mt * 4 + h2 * 2, 2), TB + hi + mt, off + h2 * 2048))
    vm.wait({('c', 0)}); a('s_waitcnt lgkmcnt(0)'); a('s_barrier')
    reads(0)
    for i in range(22):
        a('s_waitcnt lgkmcnt(0)')
        if i + 1 < 22:
            if (i + 1) % 2 == 0:
                c1 = (i + 1) // 2
                vm.wait({('c', c1)}); a('s_barrier')
                cf = c1 - 1
                if cf + 7 <= 10: dma_w2(cf + 7)
                elif cf - 4 <= 4: dma_d(cf - 4)
            reads(i + 1)
        def mm():
            for mt in range(4):
                a('v_mfma_f32_16x16x32_bf16 %s, %s, %s, %s' % (V(AC + 4 * mt, 4), V(AF + (i & 1) * 16 + mt * 4, 4), V(HFR + 4 * i, 4), '0' if i == 0 else V(AC + 4 * mt, 4)))
        if i == 21:
            a('s_cmp_eq_u32 s42, 0')
            a.skip('s_cbranch_scc0', 'L_g2_last', mm)
        else: mm()
    a('s_lshr_b32 s52, s41, 1'); a('s_mul_i32 s52, s52, 17'); a('s_mul_i32 s53, s42, 9'); a('s_add_u32 s52, s52, s53'); a('s_lshl_b32 s52, s52, 11')
    a('s_add_u32 s52, s52, %d' % DBASE)
    a('v_lshrrev_b32 v10, 2, v3')
    a('v_lshl_add_u32 v10, v4, 3, v10')
    a('v_lshlrev_b32 v10, 6, v10')
    a('v_and_b32 v11, 3, v2')
    a('v_lshl_add_u32 v10, v11, 4, v10')
    a('v_add_u32 v10, s52, v10')
    a('s_mul_i32 s52, s42, %d' % (9 * 2048)); a('s_add_u32 s52, s52, %d' % GB)
    a('v_add_u32 v11, s52, v%d' % VL16)
    for r in range(8): a('v_mov_b32 v%d, 0' % (EO + r))
    vm.wait({('d', 4)}); a('s_barrier')
    def sreads(bi):
        o = 16 + (bi & 1) * 16
        for h2 in range(2):
            a('ds_read_b64_tr_b16 %s, v10 offset:%d' % (V(o + 2 * h2, 2), bi * 2048 + h2 * 256))
            a('ds_read_b64_tr_b16 %s, v10 offset:%d' % (V(o + 4 + 2 * h2, 2), bi * 2048 + h2 * 256 + 8))
        for i in range(2):
            a('ds_read_b128 %s, v11 offset:%d' % (V(o + 8 + 4 * i, 4), bi * 2048 + i * 1024))
    def sblock(bi):
        o = 16 + (bi & 1) * 16
        Dr, Di = V(o, 4), V(o + 4, 4)
        a('s_waitcnt lgkmcnt(0)')
        a('v_mfma_f32_16x16x32_bf16 v[48:51], %s, %s, 0' % (Dr, V(MC, 4)))
        a('v_mfma_f32_16x16x32_bf16 v[52:55], %s, %s, 0' % (Di, V(MC, 4)))
        a('v_mfma_f32_16x16x32_bf16 v[48:51], %s, %s, v[48:51]' % (Di, V(NMS, 4)))
        a('v_mfma_f32_16x16x32_bf16 v[52:55], %s, %s, v[52:55]' % (Dr, V(MS, 4)))
        if bi + 1 < 9: sreads(bi + 1)
        for p in range(4):
            a('v_cvt_pk_bf16_f32 v%d, v%d, v%d' % (56 + p, 48 + 2 * p, 49 + 2 * p))
        for i in range(2):
            a('v_mfma_f32_16x16x32_bf16 %s, %s, v[56:59], %s' % (V(EO + 4 * i, 4), V(o + 8 + 4 * i, 4), V(EO + 4 * i, 4)))
    sreads(0)
    for bi in range(9):
        if bi == 8:
            a('s_cmp_eq_u32 s42, 0')
            a('s_cbranch_scc0 L_g2_sp')
            sblock(bi)
            a.label('L_g2_sp')
        else: sblock(bi)
    a('s_waitcnt lgkmcnt(0)')
    a('s_barrier')
    a('s_lshl_b32 s52, s41, 1'); a('s_add_u32 s53, s52, s42'); a('s_xor_b32 s52, s53, 1')
    a('s_lshl_b32 s52, s52, 11'); a('s_lshl_b32 s53, s53, 11')
    a('v_add_u32 v10, s52, v%d' % VL16); a('v_add_u32 v11, s53, v%d' % VL16)
    a('s_cmp_eq_u32 s42, 0')
    a('s_cbranch_scc0 L_g2_f1')
    for kh in range(2):
        if kh: a.label('L_g2_f1')
        for r in range(8):
            a('v_add_f32 v%d, v%d, v%d' % (AC + r, AC + r, EO + r))
            if kh == 0: a('v_add_f32 v%d, v%d, v%d' % (AC + 8 + r, AC + 8 + r, EO + r))
            else: a('v_sub_f32 v%d, v%d, v%d' % (AC + 8 + r, AC + 8 + r, EO + r))
        send = AC + 8 if kh == 0 else AC
        keep = AC if kh == 0 else AC + 8
        for i in range(2): a('ds_write_b128 v10, %s offset:%d' % (V(send + 4 * i, 4), i * 1024))
        a('s_waitcnt lgkmcnt(0)'); a('s_barrier')
        for i in range(2): a('ds_read_b128 %s, v11 offset:%d' % (V(16 + 4 * i, 4), i * 1024))
        a('s_waitcnt vmcnt(0) lgkmcnt(0)')
        for i in range(2):
            for p in range(2):
                a('v_lshlrev_b32 v24, 16, v%d' % (XV + 2 * i + p))
                a('v_and_b32 v25, 0xffff0000, v%d' % (XV + 2 * i + p))
                k0 = keep + 4 * i + 2 * p
                a('v_add_f32 v%d, v%d, v%d' % (k0, k0, 16 + 4 * i + 2 * p))
                a('v_add_f32 v%d, v%d, v%d' % (k0 + 1, k0 + 1, 17 + 4 * i + 2 * p))
                a('v_add_f32 v%d, v%d, v24' % (k0, k0))
                a('v_add_f32 v%d, v%d, v25' % (k0 + 1, k0 + 1))
                a('v_cvt_pk_bf16_f32 v%d, v%d, v%d' % (26 + 2 * i + p, k0, k0 + 1))
            a('buffer_store_dwordx2 %s, v%d, %s, 0 offen offset:%d' % (V(26 + 2 * i, 2), VXO, srd(S_OUT), 32 * i))
        a('s_endpgm')
    a.label('L_g2_end')
    a('s_endpgm')

def kd(name, vgpr):
    return '''.p2align 6
.amdhsa_kernel %s
  .amdhsa_next_free_vgpr %d
  .amdhsa_next_free_sgpr 96
  .amdhsa_accum_offset %d
  .amdhsa_group_segment_fixed_size 0
  .amdhsa_kernarg_size 72
  .amdhsa_user_sgpr_count 2
  .amdhsa_user_sgpr_kernarg_segment_ptr 1
  .amdhsa_system_sgpr_workgroup_id_x 1
.end_amdhsa_kernel
''' % (name, vgpr, (vgpr + 3) // 4 * 4)

def main(out):
    a = Asm()
    a.raw('; @launch kernel=g1_kernel grid=(256,1,1) block=(512,1,1) lds=163840')
    a.raw('; @launch kernel=p2_kernel grid=(256,1,1) block=(512,1,1) lds=32768')
    a.raw('; @launch kernel=g2_kernel grid=(256,1,1) block=(512,1,1) lds=163840')
    a.raw('.amdgcn_target "amdgcn-amd-amdhsa--gfx950"')
    a.raw('.text')
    gen_g1(a); gen_p2(a); gen_g2(a)
    a.raw('.section .rodata,"a"')
    a.raw(kd('g1_kernel', 256)); a.raw(kd('p2_kernel', 256)); a.raw(kd('g2_kernel', 256))
    open(out, 'w').write(a.text())
    print('lines', len(a.lines), 'nops', a.nops)

if __name__ == '__main__':
    main(sys.argv[1] if len(sys.argv) > 1 else 'cdna_kernels/%s.s' % NAME)
```

```python
import sys, struct, math
sys.path.insert(0, 'gen')
from asmlib import *

NAME = 'parallel_sum__spectral_gfnet__dense_activation_silu__prompt'
HF_OFF = 0
AB_OFF = 6 << 20
DB_OFF = 9 << 20
CNT_OFF = 12 << 20
STAMP_OFF = 13 << 20
WS_BYTES = 14 << 20
MODE = 'multi'
STAMP = False
LOG2E = 1.4426950408889634

def f2u(x): return struct.unpack('<I', struct.pack('<f', x))[0]
def hx(x): return '0x%08x' % (x & 0xffffffff)
def fl(x): return hx(f2u(x))
S_X, S_W1, S_W2, S_WS, S_OUT, S_WR, S_WI, S_DBG = 8, 12, 16, 20, 24, 28, 32, 36
def srd(n): return 's[%d:%d]' % (n, n + 3)
def SC(): return ' sc1' if MODE == 'fused' else ''
MF16 = 'v_mfma_f32_16x16x32_bf16'

class VM:
    def __init__(self, a): self.a = a; self.q = []
    def issue(self, tag): self.q.append(tag)
    def wait(self, tags):
        idx = [i for i, t in enumerate(self.q) if t in tags]
        if not idx: return
        n = len(self.q) - 1 - max(idx)
        assert n <= 63
        self.a('s_waitcnt vmcnt(%d)' % n)
        self.q = self.q[max(idx) + 1:]
    def drain(self):
        self.a('s_waitcnt vmcnt(0)'); self.q = []

class Stamps:
    def __init__(self, a, kid): self.a = a; self.kid = kid; self.names = []
    def __call__(self, name):
        if not STAMP: return
        a = self.a
        if name not in self.names: self.names.append(name)
        k = self.names.index(name)
        assert k < 18, self.names
        a('s_memtime s[78:79]'); a('s_waitcnt lgkmcnt(0)'); a('s_mov_b32 s%d, s78' % (80 + k))
    def start(self):
        if not STAMP: return
        a = self.a
        for k in range(20): a('s_mov_b32 s%d, 0' % (80 + k))
        a('s_memrealtime s[78:79]'); a('s_waitcnt lgkmcnt(0)'); a('s_mov_b32 s98, s78')
        self('start')
    def end(self):
        if not STAMP: return
        a = self.a
        self('end')
        a('s_memrealtime s[78:79]'); a('s_waitcnt lgkmcnt(0)'); a('s_mov_b32 s99, s78')
        a('s_lshl_b32 s78, s2, 3'); a('s_add_u32 s78, s78, s3'); a('s_lshl_b32 s78, s78, 7'); a('s_add_u32 s78, s78, %d' % (STAMP_OFF + self.kid * 262144))
        for k in range(20): a('v_writelane_b32 v255, s%d, %d' % (80 + k, k))
        a('v_lshlrev_b32 v254, 2, v2')
        a('s_mov_b64 exec, 0xfffff')
        a('buffer_store_dword v255, v254, %s, s78 offen' % srd(S_WS))
        a('s_mov_b64 exec, -1')

VL16 = 5
def prologue(a, exit_label):
    a('s_cmp_ge_u32 s2, 256')
    a('s_cbranch_scc1 %s' % exit_label)
    a('s_load_dwordx4 s[40:43], s[0:1], 0')
    a('s_load_dwordx2 s[44:45], s[0:1], 16')
    a('s_load_dwordx8 s[48:55], s[0:1], 32')
    a('s_load_dwordx2 s[56:57], s[0:1], 64')
    a('v_lshrrev_b32 v1, 6, v0')
    a('v_and_b32 v2, 63, v0')
    a('v_readfirstlane_b32 s3, v1')
    a('v_and_b32 v3, 15, v2')
    a('v_lshrrev_b32 v4, 4, v2')
    a('v_lshlrev_b32 v%d, 4, v2' % VL16)
    a('s_and_b32 s4, s2, 7')
    a('s_lshr_b32 s5, s2, 3')
    a('s_and_b32 s6, s3, 3')
    a('s_lshr_b32 s7, s3, 2')
    a('s_waitcnt lgkmcnt(0)')
    for home, lo, nbytes in ((S_X, 40, 2 << 20), (S_W1, 48, 512 * 2752), (S_WS, 56, WS_BYTES), (S_W2, 50, 1376 * 1024), (S_WR, 42, 2048 * 514), (S_WI, 44, 2048 * 514),
                             (S_OUT, 52, 2 << 20), (S_DBG, 54, 256)):
        a('s_mov_b32 s%d, s%d' % (home, lo))
        a('s_and_b32 s%d, s%d, 0xffff' % (home + 1, lo + 1))
        a('s_mov_b32 s%d, %s' % (home + 2, hx(nbytes)))
        a('s_mov_b32 s%d, 0x00020000' % (home + 3))

def rbf16(a, v, tmp):
    a('v_cvt_pk_bf16_f32 %s, %s, %s' % (tmp, v, v))
    a('v_lshlrev_b32 %s, 16, %s' % (v, tmp))

SLOT = 16384
SM = 8 * SLOT
FT = 9 * SLOT
LFLAG = SM + 12288

def gen_ftab(a):
    a('s_lshr_b32 s52, s3, 1'); a('s_lshl_b32 s52, s52, 4')
    a('s_and_b32 s53, s3, 1'); a('s_lshl_b32 s53, s53, 5')
    a('v_add_u32 v10, s52, v3')
    a('v_lshl_add_u32 v11, v4, 2, s53')
    a('v_mul_u32_u24 v11, v10, v11')
    a('v_and_b32 v11, 63, v11')
    a('v_cvt_f32_u32 v11, v11'); a('v_cvt_f32_u32 v10, v10')
    a('v_mul_f32 v11, %s, v11' % fl(1 / 64)); a('v_mul_f32 v10, %s, v10' % fl(1 / 64))
    for j in range(8):
        jj = (j & 3) + 16 * (j >> 2)
        if jj:
            a('v_fmamk_f32 v12, v10, %s, v11' % fl(float(jj)))
            a('v_fract_f32 v12, v12')
        src = 'v12' if jj else 'v11'
        a('v_cos_f32 v%d, %s' % (16 + j, src)); a('v_sin_f32 v%d, %s' % (24 + j, src))
    for p in range(4):
        a('v_cvt_pk_bf16_f32 v%d, v%d, v%d' % (32 + p, 16 + 2 * p, 17 + 2 * p))
        a('v_cvt_pk_bf16_f32 v%d, v%d, v%d' % (36 + p, 24 + 2 * p, 25 + 2 * p))
    a('v_lshlrev_b32 v10, 4, v0')
    a('v_add_u32 v10, %d, v10' % FT)
    a('ds_write_b128 v10, v[32:35]')
    a('ds_write_b128 v10, v[36:39] offset:8192')

XF, ACC, BF, CS, MF = 64, 128, 192, 224, 224
TRB = 80
VXR = 96
SS, GG, ONES, ST = 40, 48, 56, 60
VXD, VWO = 6, 8
def accn(nt, t): return ACC + (nt * 2 + t) * 4
def acc(nt, t): return V(accn(nt, t), 4)
STP, CSP, FSP = SM, SM + 2048, SM + 6144

def g1_phase(a, ST_, vm, after_kloop, end_label):
    a('s_lshl_b32 s43, s4, 1'); a('s_lshr_b32 s52, s5, 4'); a('s_add_u32 s43, s43, s52')
    a('s_and_b32 s44, s5, 15')
    a('s_lshl_b32 s45, s43, 2'); a('s_add_u32 s45, s45, s6')
    a('v_lshrrev_b32 v10, 3, v2')
    a('v_lshlrev_b32 v10, 16, v10')
    a('v_and_b32 v11, 7, v2'); a('v_xor_b32 v11, v11, v4')
    a('s_and_b32 s52, s3, 1'); a('s_lshl_b32 s52, s52, 20')
    a('s_lshl_b32 s53, s43, 2'); a('s_lshr_b32 s54, s3, 1'); a('s_add_u32 s53, s53, s54'); a('s_lshl_b32 s53, s53, 10')
    a('s_add_u32 s52, s52, s53')
    a('v_add_u32 v10, s52, v10')
    a('v_lshl_add_u32 v%d, v11, 4, v10' % VXD)
    a('v_xor_b32 v11, 4, v11')
    a('v_lshl_add_u32 v%d, v11, 4, v10' % (VXD + 1))
    a('v_add_u32 v%d, 0x80000, v%d' % (VXD + 1, VXD + 1))
    a('s_lshl_b32 s46, s3, 11')
    def common_setup(ty):
        a('v_lshrrev_b32 v10, 2, v3')
        a('v_lshl_add_u32 v11, v4, 3, v10')
        a('v_lshlrev_b32 v11, 8, v11')
        a('v_and_b32 v12, 1, v4')
        a('v_lshl_add_u32 v10, v12, 2, v10')
        a('v_lshl_add_u32 v11, v10, 5, v11')
        a('v_and_b32 v12, 3, v2')
        a('v_lshl_add_u32 v11, v12, 3, v11')
        if ty == 'F':
            a('s_lshl_b32 s52, s7, 13'); a('s_add_u32 s52, s52, 16384')
            a('v_add_u32 v11, s52, v11')
        for nt in range(8):
            a('v_xor_b32 v%d, %d, v11' % (TRB + nt, nt << 5))
            if ty == 'F': a('v_add_u32 v%d, 0x10000, v%d' % (TRB + 8 + nt, TRB + nt))
        a('v_lshrrev_b32 v10, 1, v3')
        a('v_xor_b32 v10, v10, v4')
        a('s_lshl_b32 s52, s6, 12')
        if ty == 'F':
            a('s_lshl_b32 s53, s7, 2')
            a('v_xor_b32 v10, s53, v10')
        else:
            a('s_lshl_b32 s53, s7, 14'); a('s_add_u32 s52, s52, s53'); a('s_add_u32 s52, s52, 65536')
        a('v_lshlrev_b32 v11, 7, v3')
        a('v_lshl_add_u32 v11, v10, 4, v11')
        a('v_add_u32 v%d, s52, v11' % VXR)
        if ty == 'F': a('v_add_u32 v%d, 0x10000, v%d' % (VXR + 1, VXR))
        else: a('v_xor_b32 v%d, 64, v%d' % (VXR + 1, VXR))
        a('v_cmp_eq_u32 s[56:57], 0, v3')
        a('v_and_b32 v10, 3, v3')
        a('v_cmp_eq_u32 s[58:59], 1, v10'); a('v_cmp_eq_u32 s[60:61], 2, v10'); a('v_cmp_eq_u32 s[62:63], 3, v10')
        a('v_lshrrev_b32 v10, 2, v3')
        a('v_cmp_eq_u32 s[64:65], v10, v4')
        a('v_cmp_gt_u32 s[66:67], 8, v3')
        for r in range(4): a('v_mov_b32 v%d, 0x3f803f80' % (ONES + r))
    def loadsF(i):
        buf = (i & 3) * 32768
        a('s_lshl_b32 s52, s50, 7')
        a('s_mul_i32 s53, s50, %d' % (64 * 2752))
        for z in range(2):
            a('s_add_u32 m0, s46, %d' % (buf + z * 1024))
            a('buffer_load_dwordx4 v%d, %s, s52 offen lds' % (VXD + z, srd(S_X)))
            vm.issue(('g1', i))
        for z in range(2):
            a('s_add_u32 m0, s46, %d' % (buf + 16384 + z * 1024))
            if z: a('s_add_u32 s53, s53, %d' % (4 * 2752))
            a('buffer_load_dwordx4 v%d, %s, s53 offen lds' % (VWO, srd(S_W1)))
            vm.issue(('g1', i))
        a('s_add_u32 s50, s50, 1'); a('s_and_b32 s50, s50, 7')
    def loadsS(i):
        buf = 65536 + (i & 1) * 32768
        for h in range(2):
            a('s_mov_b32 s52, %d' % (i * 128 + h * 512))
            for z in range(2):
                a('s_add_u32 m0, s46, %d' % (buf + h * 16384 + z * 1024))
                a('buffer_load_dwordx4 v%d, %s, s52 offen lds' % (VXD + z, srd(S_X)))
                vm.issue(('g1', i))
    def kloop(ty):
        def reads(hs):
            kk, half = hs >> 1, hs & 1
            if ty == 'F':
                bank = 8 if (kk & 3) >= 2 else 0
                boff = (kk & 1) * 32768
                xb, xoff = VXR + (1 if bank else 0), boff
            else:
                bank = 0; boff = kk * 8192
                xb, xoff = VXR + (kk & 1), ((kk >> 1) & 1) * 32768
            if half == 0:
                for t in range(2):
                    a('ds_read_b128 %s, v%d offset:%d' % (V(XF + (kk & 1) * 8 + 4 * t, 4), xb, xoff + t * 2048))
            for q in range(4):
                nt = half * 4 + q
                for h2 in range(2):
                    a('ds_read_b64_tr_b16 %s, v%d offset:%d' % (V(BF + (hs & 1) * 16 + q * 4 + h2 * 2, 2), TRB + bank + nt, boff + h2 * 1024))
        def stage_of(kk): return kk if ty == 'F' else kk >> 1
        vm.wait({('g1', 0)}); a('s_waitcnt lgkmcnt(0)'); a('s_barrier')
        ST_('first')
        reads(0)
        for hs in range(16):
            kk, half = hs >> 1, hs & 1
            a('s_waitcnt lgkmcnt(0)')
            if hs + 1 < 16:
                k1_ = (hs + 1) >> 1
                newstage = (hs + 1) % 2 == 0 and stage_of(k1_) != stage_of(k1_ - 1)
                if newstage:
                    vm.wait({('g1', stage_of(k1_))}); a('s_barrier')
                reads(hs + 1)
                if newstage:
                    s_ = stage_of(k1_)
                    if ty == 'F' and s_ + 2 < 8: loadsF(s_ + 2)
                    if ty == 'S' and s_ + 1 < 4: loadsS(s_ + 1)
            xt = [V(XF + (kk & 1) * 8 + 4 * t, 4) for t in range(2)]
            for q in range(4):
                nt = half * 4 + q
                b_ = V(BF + (hs & 1) * 16 + q * 4, 4)
                for t in range(2):
                    c = '0' if kk == 0 else acc(nt, t)
                    if ty == 'S': a('%s %s, %s, %s, %s' % (MF16, acc(nt, t), xt[t], b_, c))
                    else: a('%s %s, %s, %s, %s' % (MF16, acc(nt, t), b_, xt[t], c))
            t = half
            a('%s %s, %s, %s, %s' % (MF16, V(SS + 4 * t, 4), V(ONES, 4), xt[t], '0' if kk == 0 else V(SS + 4 * t, 4)))
            a('%s %s, %s, %s, %s' % (MF16, V(GG + 4 * t, 4), xt[t], xt[t], '0' if kk == 0 else V(GG + 4 * t, 4)))
            if ty == 'F':
                a('s_cmp_eq_u32 s6, %d' % (kk & 3))
                def body():
                    for q in range(4):
                        nt = half * 4 + q
                        a('%s %s, %s, %s, %s' % (MF16, V(CS + 4 * nt, 4), V(BF + (hs & 1) * 16 + q * 4, 4), V(ONES, 4), V(CS + 4 * nt, 4)))
                a.skip('s_cbranch_scc0', 'L_cs_%d' % hs, body)
    def epilogue(ty):
        uid = ty
        a('s_barrier')
        after_kloop()
        a('s_lshl_b32 s52, s6, 1'); a('s_add_u32 s53, s52, s7'); a('s_xor_b32 s52, s53, 1')
        a('s_lshl_b32 s52, s52, 13'); a('s_lshl_b32 s51, s53, 13')
        a('v_add_u32 v10, s52, v%d' % VL16)
        a('v_add_u32 v11, s51, v%d' % VL16)
        if ty == 'F':
            a('s_lshl_b32 s52, s3, 6'); a('s_add_u32 s52, s52, %d' % CSP)
            a('v_lshl_add_u32 v12, v4, 4, s52')
            a('s_mov_b64 exec, s[56:57]')
            for nt in range(8): a('ds_write_b128 v12, %s offset:%d' % (V(CS + 4 * nt, 4), nt * 512))
            a('s_mov_b64 exec, -1')
        a('s_lshl_b32 s52, s3, 8'); a('s_add_u32 s52, s52, %d' % STP)
        a('v_lshl_add_u32 v12, v3, 3, s52')
        for t in range(2):
            a('v_cndmask_b32 v%d, v%d, v%d, s[58:59]' % (15 + 2 * t, GG + 4 * t, GG + 4 * t + 1))
            a('v_cndmask_b32 v%d, v%d, v%d, s[60:61]' % (15 + 2 * t, 15 + 2 * t, GG + 4 * t + 2))
            a('v_cndmask_b32 v%d, v%d, v%d, s[62:63]' % (15 + 2 * t, 15 + 2 * t, GG + 4 * t + 3))
            a('v_mov_b32 v%d, v%d' % (14 + 2 * t, SS + 4 * t))
        a('s_mov_b64 exec, s[64:65]')
        a('ds_write_b64 v12, v[14:15]')
        a('ds_write_b64 v12, v[16:17] offset:128')
        a('s_mov_b64 exec, -1')
        if ty == 'S':
            a('v_and_b32 v34, 1, v3'); a('v_lshlrev_b32 v34, 31, v34'); a('v_or_b32 v34, 1.0, v34')
        a('s_cmp_eq_u32 s7, 0')
        a('s_cbranch_scc0 L_ep1_%s' % uid)
        for kh in range(2):
            if kh == 1: a.label('L_ep1_%s' % uid)
            send = range(4, 8) if kh == 0 else range(0, 4)
            keep = list(range(0, 4) if kh == 0 else range(4, 8))
            for z, nt in enumerate(send):
                for t in range(2):
                    a('ds_write_b128 v10, %s offset:%d' % (acc(nt, t), (z * 2 + t) * 1024))
            a('s_waitcnt lgkmcnt(0)')
            a('s_barrier')
            a('s_lshl_b32 s52, s6, 8'); a('s_add_u32 s52, s52, %d' % STP)
            a('v_lshl_add_u32 v12, v3, 3, s52')
            for t in range(2):
                a('ds_read_b64 v[%d:%d], v12 offset:%d' % (16 + 4 * t, 17 + 4 * t, t * 128))
                a('ds_read_b64 v[%d:%d], v12 offset:%d' % (18 + 4 * t, 19 + 4 * t, t * 128 + 1024))
            if ty == 'F':
                a('v_lshlrev_b32 v12, 6, v3')
                a('v_lshl_add_u32 v12, v4, 4, v12')
                a('v_add_u32 v12, %d, v12' % (CSP + keep[0] * 512))
                a('ds_read_b128 v[24:27], v12')
                a('ds_read_b128 v[28:31], v12 offset:1024')
            for z in range(8):
                a('ds_read_b128 %s, v11 offset:%d' % (V(BF + 4 * z, 4), z * 1024))
            a('s_waitcnt lgkmcnt(8)')
            for t in range(2):
                s0, q0, s1, q1 = 16 + 4 * t, 17 + 4 * t, 18 + 4 * t, 19 + 4 * t
                a('v_add_f32 v%d, v%d, v%d' % (s0, s0, s1))
                a('v_add_f32 v%d, v%d, v%d' % (q0, q0, q1))
                a('v_mul_f32 v%d, %s, v%d' % (s0, fl(1 / 512), s0))
                a('v_mul_f32 v%d, %s, v%d' % (q0, fl(1 / 512), q0))
                a('v_fma_f32 v%d, -v%d, v%d, v%d' % (q0, s0, s0, q0))
                a('v_max_f32 v%d, 0, v%d' % (q0, q0))
                rbf16(a, 'v%d' % s0, 'v%d' % s1)
                rbf16(a, 'v%d' % q0, 'v%d' % q1)
                a('v_add_f32 v%d, %s, v%d' % (q0, fl(1e-5), q0))
                rbf16(a, 'v%d' % q0, 'v%d' % q1)
                a('v_sqrt_f32 v%d, v%d' % (q0, q0))
                rbf16(a, 'v%d' % q0, 'v%d' % q1)
                a('v_rcp_f32 v%d, v%d' % (ST + 2 + t, q0))
                a('v_mov_b32 v%d, v%d' % (ST + t, s0))
                if ty == 'F': a('v_mul_f32 v%d, %s, v%d' % (ST + 2 + t, fl(-LOG2E), ST + 2 + t))
            if ty == 'F':
                for mod in ('quad_perm:[1,0,3,2]', 'quad_perm:[2,3,0,1]', 'row_half_mirror'):
                    for r in range(8):
                        a('v_add_f32_dpp v%d, v%d, v%d %s row_mask:0xf bank_mask:0xf' % (24 + r, 24 + r, 24 + r, mod))
                for r in range(8):
                    a('v_mov_b32_dpp v%d, v%d row_ror:8 row_mask:0xf bank_mask:0xf' % (16 + r, 24 + r))
                for r in range(8):
                    z0 = (r >> 2) * 2
                    a('v_cndmask_b32 v%d, v%d, v%d, s[66:67]' % (CS + 4 * z0 + (r & 3), 16 + r, 24 + r))
                    a('v_cndmask_b32 v%d, v%d, v%d, s[66:67]' % (CS + 4 * (z0 + 1) + (r & 3), 24 + r, 16 + r))
                a('s_lshl_b32 s52, s45, 1'); a('s_mul_i32 s52, s52, 43'); a('s_lshl_b32 s53, s44, 2'); a('s_add_u32 s53, s53, %d' % (2 * kh))
                a('s_add_u32 s52, s52, s53'); a('s_lshl_b32 s52, s52, 10'); a('s_add_u32 s54, s52, %d' % (43 * 1024))
                a('s_waitcnt lgkmcnt(0)')
                for sp in range(2):
                    def strip():
                        for t in range(2):
                            for z in (2 * sp, 2 * sp + 1):
                                nt = keep[z]
                                for r in range(4):
                                    x_ = accn(nt, t) + r; e_ = 16 + (z & 1) * 4 + r
                                    a('v_add_f32 v%d, v%d, v%d' % (x_, x_, BF + (z * 2 + t) * 4 + r))
                                    a('v_fma_f32 v%d, -v%d, v%d, v%d' % (x_, ST + t, CS + 4 * z + r, x_))
                                    a('v_mul_f32 v%d, v%d, v%d' % (x_, x_, ST + 2 + t))
                                    a('v_exp_f32 v%d, v%d' % (e_, x_))
                                for r in range(4):
                                    e_ = 16 + (z & 1) * 4 + r
                                    a('v_add_f32 v%d, 1.0, v%d' % (e_, e_))
                                    a('v_rcp_f32 v%d, v%d' % (e_, e_))
                                for r in range(4):
                                    x_ = accn(nt, t) + r; e_ = 16 + (z & 1) * 4 + r
                                    a('v_mul_f32 v%d, v%d, v%d' % (x_, x_, e_))
                                o = 24 + 4 * t + (z & 1) * 2 + 40 * sp
                                a('v_cvt_pk_bf16_f32 v%d, v%d, v%d' % (o, accn(nt, t), accn(nt, t) + 1))
                                a('v_cvt_pk_bf16_f32 v%d, v%d, v%d' % (o + 1, accn(nt, t) + 2, accn(nt, t) + 3))
                            a('buffer_store_dwordx4 %s, v%d, %s, s%d offen offset:%d%s' % (V(24 + 4 * t + 40 * sp, 4), VL16, srd(S_WS), 52 + 2 * t, sp * 1024, SC()))
                    if kh == 1 and sp == 1:
                        a('s_cmp_eq_u32 s44, 10')
                        a('s_cbranch_scc1 L_noh')
                        strip()
                        a.label('L_noh')
                    else: strip()
            else:
                a('s_lshl_b32 s52, s3, 8'); a('s_add_u32 s52, s52, %d' % FSP)
                a('v_lshl_add_u32 v12, v3, 2, s52')
                a('v_lshl_add_u32 v13, v4, 4, s52')
                for t in range(2):
                    a('ds_write_b32 v12, v%d offset:%d' % (ST + t, t * 64))
                    a('ds_write_b32 v12, v%d offset:%d' % (ST + 2 + t, 128 + t * 64))
                a('s_waitcnt lgkmcnt(0)')
                for t in range(2):
                    a('ds_read_b128 %s, v13 offset:%d' % (V(16 + 4 * t, 4), t * 64))
                    a('ds_read_b128 %s, v13 offset:%d' % (V(24 + 4 * t, 4), 128 + t * 64))
                a('v_lshlrev_b32 v12, 6, v3')
                a('v_lshl_add_u32 v12, v4, 4, v12')
                a('v_add_u32 v12, s51, v12')
                if kh == 0:
                    a('s_cmp_eq_u32 s44, 11')
                    a('s_cselect_b32 s52, %s, 0' % fl(512.0))
                    a('v_mov_b32 v32, 0'); a('v_mov_b32 v33, s52')
                    a('v_cndmask_b32 v32, v32, v33, s[56:57]')
                a('s_waitcnt lgkmcnt(0)')
                for sp in range(2):
                    re_, im_ = keep[2 * sp], keep[2 * sp + 1]
                    zr, zi = 2 * sp, 2 * sp + 1
                    for t in range(2):
                        for r in range(4):
                            x_ = accn(re_, t) + r; y_ = accn(im_, t) + r
                            px, py = BF + (zr * 2 + t) * 4 + r, BF + (zi * 2 + t) * 4 + r
                            if kh == 0:
                                a('v_fmac_f32 v%d, v%d, v34' % (x_, px)); a('v_fmac_f32 v%d, v%d, v34' % (y_, py))
                            else:
                                a('v_fma_f32 v%d, v%d, v34, v%d' % (x_, x_, px)); a('v_fma_f32 v%d, v%d, v34, v%d' % (y_, y_, py))
                            if kh == 0 and sp == 0: a('v_fma_f32 v%d, -v%d, v32, v%d' % (x_, 16 + 4 * t + r, x_))
                            a('v_mul_f32 v%d, v%d, v%d' % (y_, y_, 24 + 4 * t + r))
                            a('v_mul_f32 v%d, v%d, v%d' % (x_, x_, 24 + 4 * t + r))
                    ZR, ZI, NZ = 40, 44, 48
                    for t in range(2):
                        for p in range(2):
                            x_ = accn(re_, t) + 2 * p; y_ = accn(im_, t) + 2 * p
                            a('v_cvt_pk_bf16_f32 v%d, v%d, v%d' % (ZR + 2 * t + p, x_, x_ + 1))
                            a('v_cvt_pk_bf16_f32 v%d, v%d, v%d' % (ZI + 2 * t + p, y_, y_ + 1))
                            a('v_cvt_pk_bf16_f32 v%d, -v%d, -v%d' % (NZ + 2 * t + p, x_, x_ + 1))
                    O = accn(re_, 0)
                    for i in range(2):
                        a('%s %s, %s, %s, 0' % (MF16, V(O + 8 * i, 4), V(ZR, 4), V(MF + 4 * i, 4)))
                        a('%s %s, %s, %s, 0' % (MF16, V(O + 4 + 8 * i, 4), V(ZI, 4), V(MF + 4 * i, 4)))
                    for i in range(2):
                        a('%s %s, %s, %s, %s' % (MF16, V(O + 8 * i, 4), V(ZI, 4), V(MF + 8 + 4 * i, 4), V(O + 8 * i, 4)))
                        a('%s %s, %s, %s, %s' % (MF16, V(O + 4 + 8 * i, 4), V(NZ, 4), V(MF + 8 + 4 * i, 4), V(O + 4 + 8 * i, 4)))
                for sp in range(2):
                    O = accn(keep[2 * sp], 0)
                    for i in range(2):
                        o = 64 + 8 * sp + 4 * i
                        for p in range(4):
                            a('v_cvt_pk_bf16_f32 v%d, v%d, v%d' % (o + p, O + 8 * i + 2 * p, O + 8 * i + 2 * p + 1))
                        a('ds_write_b128 v12, %s offset:%d' % (V(o, 4), sp * 2048 + i * 1024))
                a('s_branch L_s_tail') if kh == 0 else None
            if ty == 'F': a('s_branch %s' % end_label)
        if ty == 'S':
            a.label('L_s_tail')
            a('v_lshrrev_b32 v10, 2, v2'); a('v_and_b32 v10, 3, v10')
            a('v_lshlrev_b32 v10, 14, v10')
            a('v_lshl_add_u32 v10, v4, 6, v10')
            a('v_and_b32 v11, 3, v2')
            a('v_lshl_add_u32 v10, v11, 4, v10')
            a('s_lshl_b32 s52, s7, 13'); a('s_lshl_b32 s53, s6, 10'); a('s_add_u32 s52, s52, s53')
            a('v_add_u32 v10, s52, v10')
            a('v_lshlrev_b32 v11, 12, v4')
            a('v_lshl_add_u32 v11, v3, 4, v11')
            a('s_sub_u32 s55, s44, 11'); a('s_lshl_b32 s55, s55, 2'); a('s_lshl_b32 s52, s7, 1'); a('s_add_u32 s55, s55, s52'); a('s_lshr_b32 s52, s6, 1'); a('s_add_u32 s55, s55, s52')
            a('s_lshl_b32 s52, s55, 17'); a('s_and_b32 s53, s6, 1'); a('s_lshl_b32 s53, s53, 16'); a('s_add_u32 s52, s52, s53')
            a('s_lshl_b32 s53, s43, 8'); a('s_add_u32 s52, s52, s53'); a('s_add_u32 s52, s52, %d' % AB_OFF)
            a('s_waitcnt lgkmcnt(0)')
            a('s_barrier')
            for q in range(4): a('ds_read_b128 %s, v10 offset:%d' % (V(64 + 4 * q, 4), q * 256))
            a('s_cmp_gt_u32 s55, 16')
            a('s_cbranch_scc1 %s' % end_label)
            for q in range(4):
                a('s_waitcnt lgkmcnt(%d)' % (3 - q))
                a('buffer_store_dwordx4 %s, v11, %s, s52 offen%s' % (V(64 + 4 * q, 4), srd(S_WS), SC()))
                if q < 3: a('s_add_u32 s52, s52, 16384')
            a('s_branch %s' % end_label)
    a('s_cmp_ge_u32 s44, 11')
    a('s_cbranch_scc1 L_g1_S')
    q0 = list(vm.q)
    a('s_lshl_b32 s52, s3, 3')
    a('v_add_u32 v11, s52, v4')
    a('s_mov_b32 s52, 2752')
    a('v_mul_lo_u32 v11, v11, s52')
    a('s_lshl_b32 s52, s44, 8')
    a('v_add_u32 v11, s52, v11')
    a('s_and_b32 s52, s3, 1'); a('s_lshl_b32 s52, s52, 3')
    a('v_lshlrev_b32 v10, 1, v4')
    a('v_xor_b32 v10, v10, v3')
    a('v_xor_b32 v10, s52, v10')
    a('v_lshl_add_u32 v%d, v10, 4, v11' % VWO)
    a('s_mov_b32 s50, s4')
    for i in range(3): loadsF(i)
    ST_('issued')
    common_setup('F')
    if MODE == 'fused': gen_ftab(a)
    for r in range(32): a('v_mov_b32 v%d, 0' % (CS + r))
    kloop('F'); ST_('kloop')
    epilogue('F')
    a.label('L_g1_S')
    vm.q = list(q0)
    for i in range(2): loadsS(i)
    ST_('issued')
    common_setup('S')
    if MODE == 'fused': gen_ftab(a)
    a('v_and_b32 v9, 255, v0')
    a('s_sub_u32 s55, s44, 11'); a('s_lshl_b32 s55, s55, 6'); a('s_lshl_b32 s52, s7, 5'); a('s_add_u32 s55, s55, s52')
    a('v_cvt_f32_u32 v10, v9')
    a('v_mul_f32 v10, %s, v10' % fl(1 / 512))
    a('v_cos_f32 v12, v10'); a('v_sin_f32 v13, v10')
    a('v_and_b32 v11, 3, v9'); a('v_lshrrev_b32 v14, 1, v9'); a('v_and_b32 v14, 4, v14'); a('v_or_b32 v11, v11, v14')
    a('s_lshl_b32 s52, s7, 2')
    a('v_xor_b32 v11, s52, v11')
    a('v_lshlrev_b32 v11, 5, v11'); a('v_lshl_add_u32 v11, v9, 8, v11')
    for st in range(2):
        a('v_mul_u32_u24 v14, s55, v9'); a('v_and_b32 v14, 511, v14'); a('v_cvt_f32_u32 v14, v14'); a('v_mul_f32 v14, %s, v14' % fl(1 / 512))
        if st < 1: a('s_add_u32 s55, s55, 16')
        P = [16, 18]
        O = BF + 16 * st
        a('v_cos_f32 v16, v14'); a('v_sin_f32 v17, v14')
        for i in range(16):
            cur, nxt = P[i & 1], P[(i + 1) & 1]
            if i < 15:
                a('v_pk_mul_f32 v[20:21], v[%d:%d], v[12:13] op_sel_hi:[1,0]' % (cur, cur + 1))
                if i & 1:
                    a('v_cvt_pk_bf16_f32 v%d, v%d, v%d' % (O + (i >> 1), nxt, cur))
                    a('v_cvt_pk_bf16_f32 v%d, -v%d, -v%d' % (O + 8 + (i >> 1), nxt + 1, cur + 1))
                a('v_pk_fma_f32 v[%d:%d], v[%d:%d], v[12:13], v[20:21] op_sel:[1,1,0] op_sel_hi:[0,1,1] neg_lo:[1,0,0]' % (nxt, nxt + 1, cur, cur + 1))
            else:
                a('v_cvt_pk_bf16_f32 v%d, v%d, v%d' % (O + 7, nxt, cur))
                a('v_cvt_pk_bf16_f32 v%d, -v%d, -v%d' % (O + 15, nxt + 1, cur + 1))
        a('v_xor_b32 v14, %d, v11' % ((2 * st) << 5))
        a('v_xor_b32 v15, %d, v11' % ((2 * st + 1) << 5))
        a('ds_write_b128 v14, %s' % V(O, 4)); a('ds_write_b128 v14, %s offset:16' % V(O + 4, 4))
        a('ds_write_b128 v15, %s' % V(O + 8, 4)); a('ds_write_b128 v15, %s offset:16' % V(O + 12, 4))
    for i in range(2):
        a('v_add_u32 v10, %d, v3' % (16 * i))
        a('v_lshl_add_u32 v11, v4, 8, s45')
        a('v_mul_u32_u24 v11, v10, v11')
        a('v_and_b32 v11, 2047, v11')
        a('v_cvt_f32_u32 v11, v11'); a('v_cvt_f32_u32 v10, v10')
        a('v_mul_f32 v11, %s, v11' % fl(1 / 2048)); a('v_mul_f32 v10, %s, v10' % fl(1 / 32))
        for j in range(8):
            jj = (j & 3) + 16 * (j >> 2)
            if jj:
                a('v_fmamk_f32 v12, v10, %s, v11' % fl(float(jj))); a('v_fract_f32 v12, v12')
            src = 'v12' if jj else 'v11'
            a('v_cos_f32 v%d, %s' % (16 + j, src)); a('v_sin_f32 v%d, %s' % (24 + j, src))
        for p in range(4):
            a('v_cvt_pk_bf16_f32 v%d, v%d, v%d' % (MF + 4 * i + p, 16 + 2 * p, 17 + 2 * p))
            a('v_cvt_pk_bf16_f32 v%d, v%d, v%d' % (MF + 8 + 4 * i + p, 24 + 2 * p, 25 + 2 * p))
    ST_('gen')
    kloop('S'); ST_('kloop')
    epilogue('S')

def p2_setup(a):
    a('s_lshl_b32 s42, s4, 2'); a('s_lshr_b32 s52, s5, 3'); a('s_add_u32 s42, s42, s52')
    a('s_and_b32 s52, s5, 7'); a('s_lshl_b32 s41, s52, 1'); a('s_add_u32 s41, s41, s3')
    a('s_cmp_lt_u32 s3, 2'); a('s_cselect_b32 s48, 1, 0')
    a('s_cmp_eq_u32 s41, 16'); a('s_cselect_b32 s53, 1, 0'); a('s_cmp_eq_u32 s3, 2'); a('s_cselect_b32 s53, s53, 0')
    a('s_or_b32 s48, s48, s53')
    a('s_lshl_b32 s40, s41, 5'); a('s_add_u32 s40, s40, s42')
    a('s_lshl_b32 s49, s3, 12'); a('s_add_u32 s49, s49, %d' % SM)

def p2_wloads(a):
    a('s_lshl_b32 s52, s41, 4')
    a('v_add_u32 v10, s52, v3')
    a('v_lshl_add_u32 v11, v4, 7, s42')
    a('s_mov_b32 s53, 514')
    a('v_mul_lo_u32 v11, v11, s53')
    a('v_lshl_add_u32 v11, v10, 1, v11')
    a('v_mov_b32 v12, 0x40000000')
    a('v_cmp_lt_u32 vcc, 256, v10')
    a('v_cndmask_b32 v11, v11, v12, vcc')
    for i in range(4):
        for r in range(4):
            a('s_mov_b32 s52, %d' % ((512 * i + 32 * r) * 514))
            a('buffer_load_ushort v%d, v11, %s, s52 offen' % (160 + 4 * i + r, srd(S_WR)))
            a('buffer_load_ushort v%d, v11, %s, s52 offen' % (176 + 4 * i + r, srd(S_WI)))

def p2_aload(a):
    a('s_lshl_b32 s52, s40, 12'); a('s_add_u32 s52, s52, %d' % AB_OFF)
    a('s_mov_b32 m0, s49')
    for z in range(4):
        a('buffer_load_dwordx4 v%d, %s, s52 offen offset:%d%s lds' % (VL16, srd(S_WS), z * 1024, SC()))

def p2_fread(a):
    CF, SF = 64, 96
    a('v_add_u32 v12, %d, v%d' % (FT, VL16))
    for fi in range(8): a('ds_read_b128 %s, v12 offset:%d' % (V(CF + 4 * fi, 4), fi * 1024))
    a('s_waitcnt lgkmcnt(4)')
    for fi in range(8): a('ds_read_b128 %s, v12 offset:%d' % (V(SF + 4 * fi, 4), 8192 + fi * 1024))

def p2_compute(a):
    CF, SF = 64, 96
    a('v_lshrrev_b32 v10, 2, v3')
    a('v_lshl_add_u32 v10, v4, 2, v10')
    a('v_lshlrev_b32 v10, 6, v10')
    a('v_and_b32 v11, 3, v2')
    a('v_lshl_add_u32 v10, v11, 4, v10')
    a('v_add_u32 v10, s49, v10')
    a('s_waitcnt vmcnt(0) lgkmcnt(0)')
    AR, AI, NAR = 16, 24, 32
    for ks in range(2):
        for h2 in range(2):
            a('ds_read_b64_tr_b16 %s, v10 offset:%d' % (V(AR + 4 * ks + 2 * h2, 2), ks * 2048 + h2 * 1024))
            a('ds_read_b64_tr_b16 %s, v10 offset:%d' % (V(AI + 4 * ks + 2 * h2, 2), ks * 2048 + h2 * 1024 + 8))
    for e in range(16):
        a('v_lshlrev_b32 v%d, 16, v%d' % (160 + e, 160 + e))
        a('v_lshlrev_b32 v%d, 16, v%d' % (176 + e, 176 + e))
    a('s_waitcnt lgkmcnt(0)')
    for p in range(8): a('v_xor_b32 v%d, 0x80008000, v%d' % (NAR + p, AR + p))
    XR, XI = 128, 144
    def C(i, ks): return V(CF + (i * 2 + ks) * 4, 4)
    def S(i, ks): return V(SF + (i * 2 + ks) * 4, 4)
    for i in range(4):
        for ks in range(2):
            a('%s %s, %s, %s, %s' % (MF16, V(XR + 4 * i, 4), C(i, ks), V(AR + 4 * ks, 4), '0' if ks == 0 else V(XR + 4 * i, 4)))
            a('%s %s, %s, %s, %s' % (MF16, V(XI + 4 * i, 4), C(i, ks), V(AI + 4 * ks, 4), '0' if ks == 0 else V(XI + 4 * i, 4)))
            a('%s %s, %s, %s, %s' % (MF16, V(XR + 4 * i, 4), S(i, ks), V(AI + 4 * ks, 4), V(XR + 4 * i, 4)))
            a('%s %s, %s, %s, %s' % (MF16, V(XI + 4 * i, 4), S(i, ks), V(NAR + 4 * ks, 4), V(XI + 4 * i, 4)))
    VR, VI, NVI = 40, 48, 56
    for e in range(16):
        tr, ti = 192 + (e & 3), 196 + (e & 3)
        a('v_mul_f32 v%d, v%d, v%d' % (tr, XR + e, 160 + e))
        a('v_mul_f32 v%d, v%d, v%d' % (ti, XR + e, 176 + e))
        a('v_fma_f32 v%d, -v%d, v%d, v%d' % (tr, XI + e, 176 + e, tr))
        a('v_fmac_f32 v%d, v%d, v%d' % (ti, XI + e, 160 + e))
        if e & 1:
            p = e >> 1
            a('v_cvt_pk_bf16_f32 v%d, v%d, v%d' % (VR + p, tr - 1, tr))
            a('v_cvt_pk_bf16_f32 v%d, v%d, v%d' % (VI + p, ti - 1, ti))
            a('v_cvt_pk_bf16_f32 v%d, -v%d, -v%d' % (NVI + p, ti - 1, ti))
    DR, DI = 128, 144
    a('v_lshlrev_b32 v10, 6, v3'); a('v_lshl_add_u32 v10, v4, 4, v10'); a('v_add_u32 v10, s49, v10')
    a('v_add_u32 v12, s49, v%d' % VL16)
    a('s_lshl_b32 s52, s41, 12'); a('s_lshl_b32 s53, s42, 6'); a('s_add_u32 s52, s52, s53'); a('s_add_u32 s52, s52, %d' % DB_OFF)
    a('s_mov_b32 s53, %d' % (17 * 4096))
    a('v_lshrrev_b32 v11, 3, v2')
    a('v_mul_lo_u32 v11, v11, s53')
    a('v_and_b32 v13, 4, v2')
    a('v_lshl_add_u32 v11, v13, 9, v11')
    a('v_and_b32 v13, 3, v2')
    a('v_lshl_add_u32 v11, v13, 4, v11')
    for i in range(4):
        for ks in range(2):
            a('%s %s, %s, %s, %s' % (MF16, V(DR + 4 * i, 4), V(VR + 4 * ks, 4), C(i, ks), '0' if ks == 0 else V(DR + 4 * i, 4)))
            a('%s %s, %s, %s, %s' % (MF16, V(DI + 4 * i, 4), V(VI + 4 * ks, 4), C(i, ks), '0' if ks == 0 else V(DI + 4 * i, 4)))
            a('%s %s, %s, %s, %s' % (MF16, V(DR + 4 * i, 4), V(NVI + 4 * ks, 4), S(i, ks), V(DR + 4 * i, 4)))
            a('%s %s, %s, %s, %s' % (MF16, V(DI + 4 * i, 4), V(VR + 4 * ks, 4), S(i, ks), V(DI + 4 * i, 4)))
    for i in range(4):
        for p in range(2):
            a('v_cvt_pk_bf16_f32 v%d, v%d, v%d' % (16 + 4 * i + p, DR + 4 * i + 2 * p, DR + 4 * i + 2 * p + 1))
            a('v_cvt_pk_bf16_f32 v%d, v%d, v%d' % (18 + 4 * i + p, DI + 4 * i + 2 * p, DI + 4 * i + 2 * p + 1))
        a('ds_write_b128 v10, %s offset:%d' % (V(16 + 4 * i, 4), i * 1024))
    a('s_waitcnt lgkmcnt(0)')
    for q in range(4): a('ds_read_b128 %s, v12 offset:%d' % (V(32 + 4 * q, 4), q * 1024))
    for q in range(4):
        a('s_waitcnt lgkmcnt(%d)' % (3 - q))
        a('buffer_store_dwordx4 %s, v11, %s, s52 offen%s' % (V(32 + 4 * q, 4), srd(S_WS), SC()))
        if q < 3: a('s_add_u32 s52, s52, %d' % (8 * 17 * 4096))

CSLOT = [4, 5, 6, 7, 0, 1, 2, 3, 8, 9, 4]
GSLOT = [5, 6, 7, 0, 1]
DSLOT = [2, 3, 8, 9, 1]
def g_addr(bq): return GSLOT[bq] * SLOT
def d_addr(bq): return DSLOT[bq] * SLOT + (4096 if bq == 4 else 0)
HFR, AC, AF = 64, 152, 176
MC, MS, NMS, XV, TB = 208, 212, 216, 220, 224
GP = 232
VW2, VX2, VGW = 6, 7, 8
HPD = 3

def g2_setup(a):
    a('s_lshl_b32 s68, s4, 2'); a('s_and_b32 s52, s5, 3'); a('s_add_u32 s68, s68, s52')
    a('s_lshr_b32 s69, s5, 2')
    a('s_lshl_b32 s70, s68, 1'); a('s_lshr_b32 s52, s6, 1'); a('s_add_u32 s70, s70, s52')
    a('s_and_b32 s71, s6, 1')
    a('s_lshl_b32 s72, s70, 1'); a('s_add_u32 s72, s72, s71'); a('s_mul_i32 s72, s72, 43'); a('s_add_u32 s72, s72, s7'); a('s_lshl_b32 s72, s72, 10')
    a('s_lshl_b32 s73, s3, 11')
    a('s_mul_i32 s74, s68, %d' % (17 * 4096)); a('s_add_u32 s74, s74, %d' % DB_OFF)

def g2_w2addr(a, vreg):
    a('v_lshrrev_b32 v10, 3, v2')
    a('v_and_b32 v11, 7, v2')
    a('v_and_b32 v12, 6, v10')
    a('v_xor_b32 v11, v11, v12')
    a('s_lshl_b32 s52, s3, 14'); a('s_lshl_b32 s53, s69, 7'); a('s_add_u32 s52, s52, s53')
    a('v_lshlrev_b32 v10, 10, v10')
    a('v_lshl_add_u32 v10, v11, 4, v10')
    a('v_add_u32 v%d, s52, v10' % vreg)

def dma_w2(a, vm, c, vreg):
    for z in range(2):
        a('s_mov_b32 s52, %d' % ((128 * c + 8 * z) * 1024))
        a('s_add_u32 m0, s73, %d' % (CSLOT[c] * SLOT + z * 1024))
        a('buffer_load_dwordx4 v%d, %s, s52 offen lds' % (vreg, srd(S_W2)))
        vm.issue(('c', c))

def g2_hload(a, vm, c):
    a('s_add_u32 s52, s72, %d' % (4096 * c))
    for z in range(2):
        i = 2 * c + z
        a('buffer_load_dwordx4 %s, v%d, %s, s52 offen offset:%d%s' % (V(HFR + 4 * i, 4), VL16, srd(S_WS), 2048 * z, SC()))
        vm.issue(('h', c))

def g2_consts(a, vm):
    a('s_lshl_b32 s52, s71, 20'); a('s_lshl_b32 s53, s70, 10'); a('s_add_u32 s52, s52, s53')
    a('s_lshl_b32 s53, s69, 7'); a('s_add_u32 s52, s52, s53'); a('s_lshl_b32 s53, s7, 6'); a('s_add_u32 s52, s52, s53')
    a('v_lshlrev_b32 v%d, 16, v3' % VX2)
    a('v_lshl_add_u32 v%d, v4, 3, v%d' % (VX2, VX2))
    a('v_add_u32 v%d, s52, v%d' % (VX2, VX2))
    for i in range(2):
        a('buffer_load_dwordx2 %s, v%d, %s, 0 offen offset:%d' % (V(XV + 2 * i, 2), VX2, srd(S_X), 32 * i))
        vm.issue('x')
    a('v_lshrrev_b32 v10, 2, v3')
    a('v_lshl_add_u32 v10, v4, 2, v10')
    a('v_and_b32 v11, 6, v10')
    a('v_and_b32 v12, 3, v2')
    a('v_lshrrev_b32 v13, 1, v12')
    a('v_xor_b32 v11, v11, v13')
    a('v_and_b32 v12, 1, v12')
    a('v_lshlrev_b32 v10, 7, v10')
    a('v_lshl_add_u32 v10, v12, 3, v10')
    a('s_lshl_b32 s52, s7, 12')
    a('v_add_u32 v10, s52, v10')
    for mt in range(4):
        a('v_xor_b32 v12, %d, v11' % (2 * mt))
        a('v_lshl_add_u32 v%d, v12, 4, v10' % (TB + mt))
        a('v_add_u32 v%d, 0x10000, v%d' % (TB + 4 + mt, TB + mt))
        a('v_add_u32 v%d, 0x20000, v%d' % (240 + mt, TB + mt))
    a('s_lshl_b32 s52, s71, 10'); a('s_add_u32 s52, s52, s70')
    a('v_lshl_add_u32 v10, v3, 6, s52')
    a('v_lshlrev_b32 v11, 3, v4')
    a('v_mul_u32_u24 v11, v10, v11')
    a('v_and_b32 v11, 2047, v11')
    a('v_cvt_f32_u32 v11, v11'); a('v_cvt_f32_u32 v10, v10')
    a('v_mul_f32 v11, %s, v11' % fl(1 / 2048)); a('v_mul_f32 v10, %s, v10' % fl(1 / 2048))
    for j in range(8):
        if j:
            a('v_add_f32 v11, v11, v10'); a('v_fract_f32 v11, v11')
        a('v_cos_f32 v%d, v11' % (16 + j)); a('v_sin_f32 v%d, v11' % (24 + j))
    for p in range(4):
        a('v_cvt_pk_bf16_f32 v%d, v%d, v%d' % (MC + p, 16 + 2 * p, 17 + 2 * p))
        a('v_cvt_pk_bf16_f32 v%d, v%d, v%d' % (MS + p, 24 + 2 * p, 25 + 2 * p))
        a('v_cvt_pk_bf16_f32 v%d, -v%d, -v%d' % (NMS + p, 24 + 2 * p, 25 + 2 * p))
    a('s_lshl_b32 s52, s69, 6'); a('s_lshl_b32 s53, s6, 4'); a('s_add_u32 s52, s52, s53')
    a('v_add_u32 v10, s52, v3')
    a('s_lshl_b32 s52, s7, 4')
    a('v_lshl_add_u32 v11, v4, 2, s52')
    a('v_mul_u32_u24 v11, v10, v11'); a('v_and_b32 v11, 511, v11')
    a('v_lshlrev_b32 v12, 5, v10'); a('v_and_b32 v12, 511, v12')
    a('v_cvt_f32_u32 v10, v10'); a('v_cvt_f32_u32 v11, v11'); a('v_cvt_f32_u32 v12, v12')
    for r in (10, 11, 12): a('v_mul_f32 v%d, %s, v%d' % (r, fl(1 / 512), r))
    a('v_cos_f32 v%d, v11' % GP); a('v_sin_f32 v%d, v11' % (GP + 1))
    a('v_cos_f32 v%d, v10' % (GP + 2)); a('v_sin_f32 v%d, v10' % (GP + 3))
    a('v_cos_f32 v%d, v12' % (GP + 4)); a('v_sin_f32 v%d, v12' % (GP + 5))
    gs = -LOG2E * 2.0 ** -19
    a('v_mul_f32 v%d, %s, v%d' % (GP, fl(gs), GP)); a('v_mul_f32 v%d, %s, v%d' % (GP + 1, fl(gs), GP + 1))
    a('v_cmp_eq_u32 vcc, 0, v4')
    a('s_cmp_eq_u32 s7, 0'); a('s_cselect_b32 s52, 0.5, 1.0')
    a('v_mov_b32 v10, 1.0'); a('v_mov_b32 v11, s52')
    a('v_cndmask_b32 v%d, v10, v11, vcc' % (GP + 6))
    a('v_mov_b32 v10, 0'); a('v_mov_b32 v11, 0.5')
    a('v_cndmask_b32 v%d, v10, v11, vcc' % (GP + 7))
    a('s_lshl_b32 s52, s7, 12'); a('s_lshl_b32 s53, s6, 10'); a('s_add_u32 s52, s52, s53')
    a('v_add_u32 v%d, s52, v%d' % (VGW, VL16))
    a('v_add_u32 v%d, 0x10000, v%d' % (VGW + 1, VGW))

def g_frag(a, bi):
    L = []
    c0, s0, cd, sd, cD, sD = range(GP, GP + 6)
    if bi == 8:
        L.append('v_mul_f32 v10, v%d, v%d' % (c0, GP + 7))
        L.append('v_mov_b32 v17, 0'); L.append('v_mov_b32 v18, 0'); L.append('v_mov_b32 v19, 0')
        L.append('v_cvt_pk_bf16_f32 v16, v10, v17')
    else:
        pc, ps = c0, s0
        for j in range(1, 4):
            nc, ns = 8 + 2 * j, 9 + 2 * j
            L.append('v_mul_f32 v%d, v%d, v%d' % (nc, pc, cd))
            L.append('v_mul_f32 v%d, v%d, v%d' % (ns, ps, cd))
            L.append('v_fma_f32 v%d, -v%d, v%d, v%d' % (nc, ps, sd, nc))
            L.append('v_fmac_f32 v%d, v%d, v%d' % (ns, pc, sd))
            pc, ps = nc, ns
        if bi == 0:
            L.append('v_mul_f32 v20, v%d, v%d' % (c0, GP + 6))
            L.append('v_cvt_pk_bf16_f32 v16, v20, v10')
        else:
            L.append('v_cvt_pk_bf16_f32 v16, v%d, v10' % c0)
        L.append('v_cvt_pk_bf16_f32 v17, v12, v14')
        L.append('v_cvt_pk_bf16_f32 v18, -v%d, -v11' % s0)
        L.append('v_cvt_pk_bf16_f32 v19, -v13, -v15')
        L.append('v_mul_f32 v20, v%d, v%d' % (c0, cD))
        L.append('v_mul_f32 v21, v%d, v%d' % (s0, cD))
        L.append('v_fma_f32 v20, -v%d, v%d, v20' % (s0, sD))
        L.append('v_fmac_f32 v21, v%d, v%d' % (c0, sD))
        L.append('v_mov_b32 v%d, v20' % c0); L.append('v_mov_b32 v%d, v21' % s0)
    off = g_addr(bi >> 1) + (bi & 1) * 8192
    hi = 0
    if off >= 65536: off -= 65536; hi = 1
    L.append('ds_write_b128 v%d, v[16:19] offset:%d' % (VGW + hi, off))
    return L

def g2_main(a, vm, ST_, poll_d, wait_d, late_w2):
    def dma_d(bq):
        n = 2 if bq < 4 else 1
        for z in range(n):
            if bq < 4:
                a('s_add_u32 s52, s74, s73')
                a('s_add_u32 s52, s52, %d' % (bq * SLOT + z * 1024))
                a('s_add_u32 m0, s73, %d' % (d_addr(bq) + z * 1024))
            else:
                a('s_lshl_b32 s53, s6, 10'); a('s_add_u32 s52, s74, s53'); a('s_add_u32 s52, s52, 65536')
                a('s_add_u32 m0, s53, %d' % d_addr(4))
            a('buffer_load_dwordx4 v%d, %s, s52 offen%s lds' % (VL16, srd(S_WS), SC()))
            vm.issue(('d', bq))
    def rd(i):
        c, z = i >> 1, i & 1
        off = CSLOT[c] * SLOT + z * 8192
        L = []
        for mt in range(4):
            for h2 in range(2):
                o = off + h2 * 2048
                base = TB + mt if o < 65536 else (TB + 4 + mt if o < 131072 else 240 + mt)
                L.append('ds_read_b64_tr_b16 %s, v%d offset:%d' % (V(AF + (i & 1) * 16 + mt * 4 + h2 * 2, 2), base, o & 65535))
        return L
    vm.wait({('c', 0), ('h', 0)}); a('s_waitcnt lgkmcnt(0)'); a('s_barrier')
    ST_('first2')
    for s in rd(0): a(s)
    for i in range(22):
        a('s_waitcnt lgkmcnt(0)')
        fill = []
        if i + 1 < 22:
            if (i + 1) % 2 == 0:
                c1 = (i + 1) // 2
                vm.wait({('c', c1), ('h', c1)})
                if c1 == 6: wait_d()
                a('s_barrier')
                cf = c1 - 1
                if c1 + HPD - 1 <= 10: g2_hload(a, vm, c1 + HPD - 1)
                late_w2(cf)
                if cf == 0: dma_w2(a, vm, 10, VW2)
                if cf == 4: poll_d()
                if cf == 5: dma_d(4)
                if cf >= 6: dma_d(cf - 6)
            fill = rd(i + 1)
        gl = []
        if 3 <= i <= 10: gl = g_frag(a, i - 3)
        mm = ['%s %s, %s, %s, %s' % (MF16, V(AC + 4 * mt, 4), V(AF + (i & 1) * 16 + mt * 4, 4), V(HFR + 4 * i, 4), '0' if i == 0 else V(AC + 4 * mt, 4)) for mt in range(4)]
        if i == 21:
            a('s_cmp_eq_u32 s7, 0')
            a.skip('s_cbranch_scc0', 'L_g2_last', lambda: [a(s) for s in mm])
        else:
            per = (len(gl) + 3) // 4
            for mt in range(4):
                a(mm[mt])
                for s in fill[2 * mt:2 * mt + 2]: a(s)
                for s in gl[per * mt:per * (mt + 1)]: a(s)
        if i == 11:
            a('s_cmp_eq_u32 s7, 0')
            a('s_cbranch_scc0 L_g2_g16')
            for s in g_frag(a, 8): a(s)
            a.label('L_g2_g16')
    ST_('ffn')
    a('s_lshl_b32 s52, s7, 12'); a('s_lshr_b32 s53, s6, 1'); a('s_lshl_b32 s53, s53, 11'); a('s_add_u32 s52, s52, s53')
    a('v_lshrrev_b32 v10, 2, v3')
    a('v_lshl_add_u32 v10, v4, 3, v10')
    a('v_lshlrev_b32 v10, 6, v10')
    a('v_and_b32 v11, 3, v2')
    a('v_lshl_add_u32 v10, v11, 4, v10')
    a('v_add_u32 v10, s52, v10')
    a('v_add_u32 v11, 0x20000, v10')
    a('s_lshl_b32 s52, s7, 12')
    a('v_add_u32 v12, s52, v%d' % VL16)
    a('v_add_u32 v13, 0x10000, v12')
    def sreads(bi):
        o = 16 + (bi & 1) * 24
        da = d_addr(bi >> 1) + (bi & 1) * 8192
        vb = 10
        if da >= 131072: da -= 131072; vb = 11
        assert da + 8192 <= 65536
        for h2 in range(2):
            a('ds_read_b64_tr_b16 %s, v%d offset:%d' % (V(o + 2 * h2, 2), vb, da + h2 * 256))
            a('ds_read_b64_tr_b16 %s, v%d offset:%d' % (V(o + 4 + 2 * h2, 2), vb, da + h2 * 256 + 8))
        ga = g_addr(bi >> 1) + (bi & 1) * 8192
        vb = 12
        if ga >= 65536: ga -= 65536; vb = 13
        for mt in range(4):
            a('ds_read_b128 %s, v%d offset:%d' % (V(o + 8 + 4 * mt, 4), vb, ga + mt * 1024))
    YA, YB, YF = 176, 180, 184
    def sblock(bi, nxt):
        o = 16 + (bi & 1) * 24
        Dr, Di = V(o, 4), V(o + 4, 4)
        a('s_waitcnt lgkmcnt(0)')
        a('%s %s, %s, %s, 0' % (MF16, V(YA, 4), Dr, V(MC, 4)))
        a('%s %s, %s, %s, 0' % (MF16, V(YB, 4), Di, V(MC, 4)))
        a('%s %s, %s, %s, %s' % (MF16, V(YA, 4), Di, V(NMS, 4), V(YA, 4)))
        a('%s %s, %s, %s, %s' % (MF16, V(YB, 4), Dr, V(MS, 4), V(YB, 4)))
        if nxt is not None: nxt()
        for p in range(4):
            a('v_cvt_pk_bf16_f32 v%d, v%d, v%d' % (YF + p, YA + 2 * p, YA + 2 * p + 1))
        for mt in range(4):
            a('%s %s, %s, %s, %s' % (MF16, V(AC + 4 * mt, 4), V(o + 8 + 4 * mt, 4), V(YF, 4), V(AC + 4 * mt, 4)))
    vm.wait({('d', 2)}); a('s_waitcnt lgkmcnt(0)'); a('s_barrier')
    sreads(0)
    for bi in range(8):
        def nxt():
            if bi + 1 == 6:
                vm.wait({('d', 3)}); a('s_barrier')
            sreads(bi + 1)
        sblock(bi, nxt)
    a('s_cmp_eq_u32 s7, 0')
    a('s_cbranch_scc0 L_g2_sp')
    sblock(8, None)
    a.label('L_g2_sp')
    ST_('spec')
    a('s_waitcnt lgkmcnt(0)')
    a('s_lshl_b32 s52, s6, 1'); a('s_add_u32 s53, s52, s7'); a('s_xor_b32 s52, s53, 1')
    a('s_lshl_b32 s52, s52, 11'); a('s_lshl_b32 s53, s53, 11')
    a('s_add_u32 s52, s52, %d' % (4 * SLOT)); a('s_add_u32 s53, s53, %d' % (4 * SLOT))
    a('v_add_u32 v10, s52, v%d' % VL16); a('v_add_u32 v11, s53, v%d' % VL16)
    a('s_mov_b32 s54, %s' % fl(-math.log(2.0)))
    a('s_cmp_eq_u32 s7, 0')
    a('s_cbranch_scc0 L_g2_f1')
    for kh in range(2):
        if kh: a.label('L_g2_f1')
        send = AC + 8 if kh == 0 else AC
        keep = AC if kh == 0 else AC + 8
        for i in range(2): a('ds_write_b128 v10, %s offset:%d' % (V(send + 4 * i, 4), i * 1024))
        a('s_waitcnt lgkmcnt(0)'); a('s_barrier')
        for i in range(2): a('ds_read_b128 %s, v11 offset:%d' % (V(16 + 4 * i, 4), i * 1024))
        for i in range(2):
            for p in range(2):
                a('v_lshlrev_b32 v%d, 16, v%d' % (32 + 4 * i + 2 * p, XV + 2 * i + p))
                a('v_and_b32 v%d, 0xffff0000, v%d' % (33 + 4 * i + 2 * p, XV + 2 * i + p))
        a('s_waitcnt lgkmcnt(0)')
        for i in range(2):
            for r in range(4):
                k0 = keep + 4 * i + r
                a('v_add_f32 v%d, v%d, v%d' % (k0, k0, 16 + 4 * i + r))
                a('v_fma_f32 v%d, v%d, s54, v%d' % (k0, k0, 32 + 4 * i + r))
            for p in range(2):
                a('v_cvt_pk_bf16_f32 v%d, v%d, v%d' % (26 + 2 * i + p, keep + 4 * i + 2 * p, keep + 4 * i + 2 * p + 1))
            a('buffer_store_dwordx2 %s, v%d, %s, 0 offen offset:%d' % (V(26 + 2 * i, 2), VX2, srd(S_OUT), 32 * i))
        ST_.end()
        a('s_endpgm')

def kd(name, vgpr):
    return '''.p2align 6
.amdhsa_kernel %s
  .amdhsa_next_free_vgpr %d
  .amdhsa_next_free_sgpr 102
  .amdhsa_accum_offset %d
  .amdhsa_group_segment_fixed_size 0
  .amdhsa_kernarg_size 72
  .amdhsa_user_sgpr_count 2
  .amdhsa_user_sgpr_kernarg_segment_ptr 1
  .amdhsa_system_sgpr_workgroup_id_x 1
.end_amdhsa_kernel
''' % (name, vgpr, (vgpr + 3) // 4 * 4)
def khead(a, n): a.raw('.globl %s\n.p2align 8\n.type %s,@function\n%s:' % (n, n, n))

def main_multi(out):
    a = Asm()
    for k in ('g1', 'p2', 'g2'): a.raw('; @launch kernel=%s_kernel grid=(256,1,1) block=(512,1,1) lds=163840' % k)
    a.raw('.amdgcn_target "amdgcn-amd-amdhsa--gfx950"\n.text')
    khead(a, 'g1_kernel'); prologue(a, 'L_g1_x')
    s1 = Stamps(a, 0); s1.start()
    g1_phase(a, s1, VM(a), lambda: None, 'L_g1_end')
    a.label('L_g1_end'); s1.end(); a.label('L_g1_x'); a('s_endpgm')
    khead(a, 'p2_kernel'); prologue(a, 'L_p2_x')
    s2 = Stamps(a, 1); s2.start()
    p2_setup(a)
    a('s_cmp_eq_u32 s48, 0'); a('s_cbranch_scc1 L_p2_t')
    p2_wloads(a); p2_aload(a)
    a.label('L_p2_t')
    gen_ftab(a); a('s_waitcnt lgkmcnt(0)'); a('s_barrier')
    a('s_cmp_eq_u32 s48, 0'); a('s_cbranch_scc1 L_p2_e')
    p2_fread(a); p2_compute(a)
    a.label('L_p2_e'); s2.end()
    a.label('L_p2_x'); a('s_endpgm')
    khead(a, 'g2_kernel'); prologue(a, 'L_g2_x')
    s3 = Stamps(a, 2); s3.start()
    vm = VM(a)
    g2_setup(a); g2_w2addr(a, VW2)
    for c in range(HPD):
        dma_w2(a, vm, c, VW2); g2_hload(a, vm, c)
    s3('issued')
    g2_consts(a, vm)
    s3('gen')
    g2_main(a, vm, s3, lambda: None, lambda: None, lambda cf: dma_w2(a, vm, cf + HPD, VW2) if cf + HPD <= 9 else None)
    a.label('L_g2_x'); a('s_endpgm')
    a.raw('.section .rodata,"a"')
    for k in ('g1', 'p2', 'g2'): a.raw(kd(k + '_kernel', 256))
    open(out, 'w').write(a.text())
    print('lines', len(a.lines), 'nops', a.nops)
    if STAMP: print(','.join(s1.names), ','.join(s2.names), ','.join(s3.names))


def cnt_off(i): return CNT_OFF + i * 256
CA, CH, CD = 0, 8, 32

def main_fused(out):
    global MODE
    MODE = 'fused'
    a = Asm()
    K = NAME + '_kernel'
    a.raw('; @launch grid=(256,1,1) block=(512,1,1) lds=163840')
    a.raw('.amdgcn_target "amdgcn-amd-amdhsa--gfx950"\n.text')
    khead(a, K); prologue(a, 'L_x')
    st = Stamps(a, 0); st.start()
    vm = VM(a)
    a('v_mov_b32 v9, 0')
    a('s_or_b32 s52, s2, s3')
    a('s_cmp_lg_u32 s52, 0')
    a('s_cbranch_scc1 L_noinit')
    a('v_lshlrev_b32 v10, 8, v2')
    a('s_mov_b32 s52, %d' % CNT_OFF)
    a('buffer_store_dword v9, v10, %s, s52 offen sc1' % srd(S_WS))
    a('v_mov_b32 v10, 1')
    a('s_waitcnt vmcnt(0)')
    a('s_mov_b64 exec, 1')
    a('buffer_store_dword v10, v9, %s, 0 offen sc1' % srd(S_DBG))
    a('s_mov_b64 exec, -1')
    a.label('L_noinit')
    a('v_mov_b32 v10, %d' % LFLAG)
    a('ds_write_b32 v10, v9')
    g2_setup(a)
    def after_kloop():
        g2_w2addr(a, VW2)
        a('v_mov_b32 v9, 0')
        a('buffer_load_dword v100, v9, %s, 0 offen sc1' % srd(S_DBG))
        for c in range(4): dma_w2(a, vm, c, VW2)
    g1_phase(a, st, vm, after_kloop, 'L_g1_end')
    a.label('L_g1_end')
    st('g1st')
    vm.drain()
    a('s_barrier')
    st('pb')
    a('s_cmp_lg_u32 s3, 0')
    a('s_cbranch_scc1 L_nopub')
    a('s_mov_b64 exec, 1')
    a.label('L_init_poll')
    a('v_readfirstlane_b32 s52, v100')
    a('s_cmp_lg_u32 s52, 0')
    a('s_cbranch_scc1 L_init_ok')
    a('buffer_load_dword v100, v9, %s, 0 offen sc1' % srd(S_DBG))
    a('s_waitcnt vmcnt(0)')
    a('s_branch L_init_poll')
    a.label('L_init_ok')
    a('s_sub_u32 s52, s44, 11'); a('s_add_u32 s53, s43, %d' % CH)
    a('s_cmp_ge_u32 s44, 11'); a('s_cselect_b32 s52, s52, s53')
    a('s_lshl_b32 s52, s52, 8'); a('s_add_u32 s52, s52, %d' % CNT_OFF)
    a('v_mov_b32 v10, 1')
    a('buffer_atomic_add v10, v9, %s, s52 offen sc1' % srd(S_WS))
    a('s_mov_b64 exec, -1')
    a.label('L_nopub')
    for c in range(4, 8): dma_w2(a, vm, c, VW2)
    p2_setup(a)
    a('s_cmp_eq_u32 s48, 0'); a('s_cbranch_scc1 L_nounit')
    q1 = list(vm.q)
    p2_wloads(a)
    g2_consts(a, VM(a))
    p2_fread(a)
    a('s_lshr_b32 s52, s41, 2'); a('s_lshl_b32 s52, s52, 8'); a('s_add_u32 s55, s52, %d' % cnt_off(CA))
    a('v_mov_b32 v9, 0')
    a.label('L_pollA')
    a('buffer_load_dword v10, v9, %s, s55 offen sc1' % srd(S_WS))
    a('s_waitcnt vmcnt(0)')
    a('v_readfirstlane_b32 s52, v10')
    a('s_cmp_ge_u32 s52, 16')
    a('s_cbranch_scc1 L_pollA_ok')
    a('s_sleep 2')
    a('s_branch L_pollA')
    a.label('L_pollA_ok')
    st('aok')
    p2_aload(a)
    p2_compute(a)
    a('s_and_b32 s52, s2, 15'); a('s_lshl_b32 s52, s52, 8'); a('s_add_u32 s52, s52, %d' % cnt_off(CD))
    a('v_mov_b32 v9, 0'); a('v_mov_b32 v10, 1')
    a('s_waitcnt vmcnt(0)')
    a('s_mov_b64 exec, 1')
    a('buffer_atomic_add v10, v9, %s, s52 offen sc1' % srd(S_WS))
    a('s_mov_b64 exec, -1')
    st('p2')
    a('s_branch L_waitH')
    a.label('L_nounit')
    g2_consts(a, VM(a))
    a('s_cmp_lg_u32 s3, 7'); a('s_cbranch_scc1 L_waitH')
    a('s_lshr_b32 s52, s68, 1'); a('s_lshl_b32 s52, s52, 8'); a('s_add_u32 s55, s52, %d' % cnt_off(CH))
    a('v_mov_b32 v9, 0')
    a.label('L_pollH')
    a('buffer_load_dword v10, v9, %s, s55 offen sc1' % srd(S_WS))
    a('s_waitcnt vmcnt(0)')
    a('v_readfirstlane_b32 s52, v10')
    a('s_cmp_ge_u32 s52, 11')
    a('s_cbranch_scc1 L_pollH_ok')
    a('s_sleep 2')
    a('s_branch L_pollH')
    a.label('L_pollH_ok')
    a('v_mov_b32 v10, %d' % LFLAG); a('v_mov_b32 v11, 1')
    a('ds_write_b32 v10, v11')
    a.label('L_waitH')
    a('v_mov_b32 v10, %d' % LFLAG)
    a.label('L_spinH')
    a('ds_read_b32 v11, v10')
    a('s_waitcnt lgkmcnt(0)')
    a('v_readfirstlane_b32 s52, v11')
    a('s_cmp_lg_u32 s52, 0')
    a('s_cbranch_scc1 L_spinH_ok')
    a('s_sleep 1')
    a('s_branch L_spinH')
    a.label('L_spinH_ok')
    st('hok')
    a('v_add_u32 v%d, 0x10000, v%d' % (VGW + 1, VGW))
    vm.q = q1 + ['x', 'x']
    for c in range(HPD): g2_hload(a, vm, c)
    a('v_lshlrev_b32 v245, 8, v3')
    def poll_d():
        a('s_cmp_lg_u32 s3, 7')
        def body():
            a('s_mov_b32 s52, %d' % cnt_off(CD))
            a('buffer_load_dword v244, v245, %s, s52 offen sc1' % srd(S_WS))
            a('v_lshrrev_b32 v246, 3, v3'); a('v_lshlrev_b32 v246, 2, v246'); a('v_add_u32 v246, 32, v246')
        a.skip('s_cbranch_scc1', 'L_pd1', body)
    def wait_d():
        a('s_cmp_lg_u32 s3, 7')
        a('s_cbranch_scc1 L_wd_ok')
        a('s_mov_b32 s52, %d' % cnt_off(CD))
        a.label('L_wd')
        a('s_waitcnt vmcnt(0)')
        a('v_cmp_lt_u32 vcc, v244, v246')
        a('s_cmp_eq_u64 vcc, 0')
        a('s_cbranch_scc1 L_wd_ok')
        a('s_sleep 2')
        a('buffer_load_dword v244, v245, %s, s52 offen sc1' % srd(S_WS))
        a('s_branch L_wd')
        a.label('L_wd_ok')
    def late_w2(cf):
        if cf == 0:
            dma_w2(a, vm, 8, VW2); dma_w2(a, vm, 9, VW2)
    g2_main(a, vm, st, poll_d, wait_d, late_w2)
    a.label('L_x'); a('s_endpgm')
    a.raw('.section .rodata,"a"')
    a.raw(kd(K, 256))
    open(out, 'w').write(a.text())
    print('lines', len(a.lines), 'nops', a.nops)
    if STAMP: print(','.join(st.names))

if __name__ == '__main__':
    if 'stamp' in sys.argv[2:]: STAMP = True
    out = sys.argv[1] if len(sys.argv) > 1 else 'cdna_kernels/%s.s' % NAME
    if 'multi' in sys.argv[2:]: main_multi(out)
    else: main_fused(out)
```

```python
from asmlib import *
import gen6 as G

XF, BF, ACC, CST = 64, 80, 128, 112
XRB, TRB, MF = 116, 192, 224
SS, GG, ONES, ST = 40, 44, 56, 60
VXD, VWO = 6, 8
def accn(p, tau, hi=0): return ACC + hi * 32 + (p * 2 + tau) * 4
def acc(p, tau, hi=0): return V(accn(p, tau, hi), 4)

def g1_phase(a, ST_, vm, hooks, end_label):
    MF16, srd, fl, SC = G.MF16, G.srd, G.fl, G.SC
    STF, CSF = G.SM, G.SM + 1024
    FILL = []
    a('s_lshl_b32 s43, s4, 1'); a('s_lshr_b32 s52, s5, 4'); a('s_add_u32 s43, s43, s52')
    a('s_and_b32 s44, s5, 15')
    a('s_lshl_b32 s45, s43, 2'); a('s_add_u32 s45, s45, s6')
    a('v_lshrrev_b32 v10, 3, v2')
    a('v_lshlrev_b32 v10, 16, v10')
    a('v_and_b32 v11, 7, v2'); a('v_xor_b32 v11, v11, v4')
    a('s_and_b32 s52, s3, 1'); a('s_lshl_b32 s52, s52, 20')
    a('s_lshl_b32 s53, s43, 2'); a('s_lshr_b32 s54, s3, 1'); a('s_add_u32 s53, s53, s54'); a('s_lshl_b32 s53, s53, 10')
    a('s_add_u32 s52, s52, s53')
    a('v_add_u32 v10, s52, v10')
    a('v_lshl_add_u32 v%d, v11, 4, v10' % VXD)
    a('v_xor_b32 v11, 4, v11')
    a('v_lshl_add_u32 v%d, v11, 4, v10' % (VXD + 1))
    a('v_add_u32 v%d, 0x80000, v%d' % (VXD + 1, VXD + 1))
    a('s_lshl_b32 s46, s3, 11')
    def common_setup(ty):
        a('v_lshrrev_b32 v10, 2, v3')
        a('v_lshl_add_u32 v11, v4, 3, v10')
        a('v_lshlrev_b32 v11, 8, v11')
        a('v_and_b32 v12, 1, v4')
        a('v_lshl_add_u32 v10, v12, 2, v10')
        a('s_lshl_b32 s52, s7, 2')
        if ty == 'F': a('s_add_u32 s52, s52, s6')
        a('v_xor_b32 v10, s52, v10')
        a('v_lshl_add_u32 v11, v10, 5, v11')
        a('v_and_b32 v12, 3, v2')
        a('v_lshl_add_u32 v11, v12, 3, v11')
        if ty == 'F': a('v_add_u32 v11, 16384, v11')
        for p in range(4):
            a('v_xor_b32 v%d, %d, v11' % (TRB + p, p << 5))
            if ty == 'F': a('v_add_u32 v%d, 0x10000, v%d' % (TRB + 4 + p, TRB + p))
        a('v_lshrrev_b32 v10, 1, v3')
        a('v_xor_b32 v10, v10, v4')
        a('s_lshl_b32 s52, s6, 12'); a('s_lshl_b32 s53, s7, 11'); a('s_add_u32 s52, s52, s53')
        if ty == 'S': a('s_add_u32 s52, s52, 65536')
        a('v_lshlrev_b32 v11, 7, v3')
        a('v_lshl_add_u32 v11, v10, 4, v11')
        a('v_add_u32 v%d, s52, v11' % XRB)
        a('v_xor_b32 v%d, 2048, v%d' % (XRB + 1, XRB))
        a('v_xor_b32 v%d, 64, v%d' % (XRB + 2, XRB))
        a('v_xor_b32 v%d, 64, v%d' % (XRB + 3, XRB + 1))
        if ty == 'F':
            for q in range(4): a('v_add_u32 v%d, 0x10000, v%d' % (XRB + 4 + q, XRB + q))
        a('v_cmp_eq_u32 s[56:57], 0, v3')
        a('v_and_b32 v10, 3, v3')
        a('v_cmp_eq_u32 s[58:59], 1, v10'); a('v_cmp_eq_u32 s[60:61], 2, v10'); a('v_cmp_eq_u32 s[62:63], 3, v10')
        a('v_lshrrev_b32 v10, 2, v3')
        a('v_cmp_eq_u32 s[64:65], v10, v4')
        for r in range(4): a('v_mov_b32 v%d, 0x3f803f80' % (ONES + r))
    def loads(ty, i):
        if ty == 'F':
            buf = (i & 3) * 32768
            a('s_lshl_b32 s52, s50, 7')
            a('s_mul_i32 s53, s50, %d' % (64 * 2752))
        else:
            buf = 65536 + (i & 3) * 16384
            a('s_mov_b32 s52, %d' % (i * 128))
        for z in range(2):
            a('s_add_u32 m0, s46, %d' % (buf + z * 1024))
            a('buffer_load_dwordx4 v%d, %s, s52 offen lds' % (VXD + z, srd(G.S_X)))
            vm.issue(('g1', i))
        if ty == 'F':
            for z in range(2):
                a('s_add_u32 m0, s46, %d' % (buf + 16384 + z * 1024))
                if z: a('s_add_u32 s53, s53, %d' % (4 * 2752))
                a('buffer_load_dwordx4 v%d, %s, s53 offen lds' % (VWO, srd(G.S_W1)))
                vm.issue(('g1', i))
            a('s_add_u32 s50, s50, 1'); a('s_and_b32 s50, s50, 7')
    def kloop(ty):
        def reads(kk):
            st, ks = kk >> 1, kk & 1
            L = []
            if ty == 'F':
                bank = 1 if (st & 3) >= 2 else 0
                xoff = (st & 1) * 32768; boff = xoff + ks * 8192
            else:
                bank = 0; xoff = (st & 3) * 16384; boff = (kk & 7) * 8192
            for tau in range(2):
                L.append('ds_read_b128 %s, v%d offset:%d' % (V(XF + (kk & 1) * 8 + 4 * tau, 4), XRB + bank * 4 + ks * 2 + tau, xoff))
            for p in range(4):
                for h2 in range(2):
                    L.append('ds_read_b64_tr_b16 %s, v%d offset:%d' % (V(BF + (kk & 1) * 16 + p * 4 + h2 * 2, 2), TRB + bank * 4 + p, boff + h2 * 1024))
            return L
        vm.wait({('g1', 0)}); a('s_waitcnt lgkmcnt(0)'); a('s_barrier')
        ST_('first')
        for s in reads(0): a(s)
        for kk in range(16):
            a('s_waitcnt lgkmcnt(0)')
            fill = []
            if kk + 1 < 16:
                if (kk + 1) % 2 == 0:
                    s_ = (kk + 1) // 2
                    vm.wait({('g1', s_)}); a('s_barrier')
                    if s_ + 2 < 8: loads(ty, s_ + 2)
                    hooks(ty, 's%d' % s_)
                fill = reads(kk + 1)
            xt = [V(XF + (kk & 1) * 8 + 4 * tau, 4) for tau in range(2)]
            hi = 1 if (ty == 'S' and kk >= 8) else 0
            first = (kk == 0) or (ty == 'S' and kk == 8)
            mm = []
            for p in range(4):
                b_ = V(BF + (kk & 1) * 16 + p * 4, 4)
                for tau in range(2):
                    c = '0' if first else acc(p, tau, hi)
                    if ty == 'S': mm.append('%s %s, %s, %s, %s' % (MF16, acc(p, tau, hi), xt[tau], b_, c))
                    else: mm.append('%s %s, %s, %s, %s' % (MF16, acc(p, tau), b_, xt[tau], c))
            mm.append('%s %s, %s, %s, %s' % (MF16, V(SS, 4), V(ONES, 4), xt[0], '0' if kk == 0 else V(SS, 4)))
            mm.append('%s %s, %s, %s, %s' % (MF16, V(GG, 4), xt[0], xt[0], '0' if kk == 0 else V(GG, 4)))
            if ty == 'F':
                mm.append('%s %s, %s, %s, %s' % (MF16, V(CST, 4), V(BF + (kk & 1) * 16, 4), V(ONES, 4), '0' if kk == 0 else V(CST, 4)))
            for i, m in enumerate(mm):
                a(m)
                if i < len(fill): a(fill[i])
                if FILL and kk >= 1 and i < 8: a(FILL.pop(0))
        assert not FILL
    def epilogue(ty):
        a('v_cndmask_b32 v17, v%d, v%d, s[58:59]' % (GG, GG + 1))
        a('v_cndmask_b32 v17, v17, v%d, s[60:61]' % (GG + 2))
        a('v_cndmask_b32 v17, v17, v%d, s[62:63]' % (GG + 3))
        a('v_mul_f32 v16, %s, v%d' % (fl(1 / 512), SS))
        a('v_mul_f32 v17, %s, v17' % fl(1 / 512))
        a('v_fma_f32 v17, -v16, v16, v17')
        a('v_max_f32 v17, 0, v17')
        G.rbf16(a, 'v16', 'v18')
        G.rbf16(a, 'v17', 'v18')
        a('v_add_f32 v17, %s, v17' % fl(1e-5))
        G.rbf16(a, 'v17', 'v18')
        a('v_sqrt_f32 v17, v17')
        G.rbf16(a, 'v17', 'v18')
        a('v_rcp_f32 v17, v17')
        if ty == 'F': a('v_mul_f32 v17, %s, v17' % fl(-G.LOG2E))
        a('s_lshl_b32 s52, s6, 7'); a('s_lshl_b32 s53, s7, 6'); a('s_add_u32 s53, s53, s52'); a('s_add_u32 s53, s53, %d' % STF)
        a('v_lshl_add_u32 v12, v3, 2, s53')
        a('s_mov_b64 exec, s[64:65]')
        a('ds_write_b32 v12, v16')
        a('ds_write_b32 v12, v17 offset:512')
        if ty == 'F':
            a('s_lshl_b32 s53, s3, 6'); a('s_add_u32 s53, s53, %d' % CSF)
            a('s_mov_b64 exec, -1')
            a('v_lshl_add_u32 v13, v4, 4, s53')
            a('s_mov_b64 exec, s[56:57]')
            a('ds_write_b128 v13, %s' % V(CST, 4))
        a('s_mov_b64 exec, -1')
        a('s_waitcnt lgkmcnt(0)')
        a('s_barrier')
        hooks(ty, 'kend')
        if ty == 'F':
            a('v_xor_b32 v14, 64, v12')
            a('ds_read_b32 v%d, v12' % ST); a('ds_read_b32 v%d, v12 offset:512' % (ST + 2))
            a('ds_read_b32 v%d, v14' % (ST + 1)); a('ds_read_b32 v%d, v14 offset:512' % (ST + 3))
            for p in range(4):
                a('v_xor_b32 v15, %d, v13' % (p << 6))
                a('ds_read_b128 %s, v15' % V(BF + 4 * p, 4))
            a('s_lshl_b32 s52, s45, 1'); a('s_add_u32 s52, s52, s7'); a('s_xor_b32 s53, s52, 1')
            a('s_mul_i32 s52, s52, 43'); a('s_mul_i32 s53, s53, 43')
            a('s_lshl_b32 s54, s44, 2'); a('s_lshl_b32 s55, s7, 1'); a('s_add_u32 s54, s54, s55'); a('s_lshr_b32 s55, s6, 1')
            a('s_add_u32 s40, s54, s55'); a('s_xor_b32 s55, s55, 1'); a('s_add_u32 s41, s54, s55')
            for sp in range(2):
                for tau in range(2):
                    a('s_add_u32 s76, s%d, s%d' % (52 + tau, 40 + sp))
                    a('s_lshl_b32 s76, s76, 10')
                    a('s_cmp_ge_u32 s%d, 43' % (40 + sp))
                    a('s_cselect_b32 s%d, 0x7f000000, s76' % (G.S_TMP + 2 * sp + tau))
            a('s_and_b32 s52, s6, 1'); a('s_sub_u32 s52, 0, s52'); a('s_mov_b32 s53, s52')
            a('s_waitcnt lgkmcnt(0)')
            for sp in range(2):
                for tau in range(2):
                    o = XF + 8 * sp + 4 * tau
                    for z in range(2):
                        p = 2 * sp + z
                        for r in range(4):
                            x_ = accn(p, tau) + r; e_ = 16 + z * 4 + r
                            a('v_fma_f32 v%d, -v%d, v%d, v%d' % (x_, ST + tau, BF + 4 * p + r, x_))
                            a('v_mul_f32 v%d, v%d, v%d' % (x_, x_, ST + 2 + tau))
                            a('v_exp_f32 v%d, v%d' % (e_, x_))
                        for r in range(4):
                            e_ = 16 + z * 4 + r
                            a('v_add_f32 v%d, 1.0, v%d' % (e_, e_))
                            a('v_rcp_f32 v%d, v%d' % (e_, e_))
                        for r in range(4):
                            x_ = accn(p, tau) + r; e_ = 16 + z * 4 + r
                            a('v_mul_f32 v%d, v%d, v%d' % (x_, x_, e_))
                        a('v_cvt_pk_bf16_f32 v%d, v%d, v%d' % (o + 2 * z, accn(p, tau), accn(p, tau) + 1))
                        a('v_cvt_pk_bf16_f32 v%d, v%d, v%d' % (o + 2 * z + 1, accn(p, tau) + 2, accn(p, tau) + 3))
                    a('s_mov_b64 exec, s[52:53]')
                    a('v_swap_b32 v%d, v%d' % (o, o + 2)); a('v_swap_b32 v%d, v%d' % (o + 1, o + 3))
                    a('s_mov_b64 exec, -1')
                    a('buffer_store_dwordx4 %s, v%d, %s, s%d offen%s' % (V(o, 4), G.VL16, srd(G.S_WS), G.S_TMP + 2 * sp + tau, SC()))
            a('s_branch %s' % end_label)
        else:
            a('s_lshl_b32 s52, s6, 7'); a('s_lshl_b32 s53, s7, 6'); a('s_add_u32 s53, s53, s52'); a('s_add_u32 s53, s53, %d' % STF)
            a('v_lshl_add_u32 v13, v4, 4, s53')
            a('v_xor_b32 v14, 64, v13')
            a('ds_read_b128 v[16:19], v13'); a('ds_read_b128 v[24:27], v13 offset:512')
            a('ds_read_b128 v[20:23], v14'); a('ds_read_b128 v[28:31], v14 offset:512')
            a('v_and_b32 v34, 1, v3'); a('v_lshlrev_b32 v34, 31, v34'); a('v_or_b32 v34, 1.0, v34')
            a('s_add_u32 s52, s44, s7'); a('s_cmp_eq_u32 s52, 11')
            a('s_cselect_b32 s52, %s, 0' % fl(512.0))
            a('v_mov_b32 v32, 0'); a('v_mov_b32 v33, s52')
            a('v_cndmask_b32 v32, v32, v33, s[56:57]')
            a('s_lshl_b32 s52, s3, 12')
            a('v_lshlrev_b32 v12, 6, v3'); a('v_lshl_add_u32 v12, v4, 4, v12'); a('v_add_u32 v12, s52, v12')
            a('s_waitcnt lgkmcnt(0)')
            for sp in range(2):
                re_, im_ = 2 * sp, 2 * sp + 1
                for tau in range(2):
                    for r in range(4):
                        x_ = accn(re_, tau) + r; y_ = accn(im_, tau) + r
                        a('v_fmac_f32 v%d, v%d, v34' % (x_, x_ + 32)); a('v_fmac_f32 v%d, v%d, v34' % (y_, y_ + 32))
                        if sp == 0: a('v_fma_f32 v%d, -v%d, v32, v%d' % (x_, 16 + 4 * tau + r, x_))
                        a('v_mul_f32 v%d, v%d, v%d' % (y_, y_, 24 + 4 * tau + r))
                        a('v_mul_f32 v%d, v%d, v%d' % (x_, x_, 24 + 4 * tau + r))
                ZR, ZI, NZ = 36 + 12 * sp, 40 + 12 * sp, 44 + 12 * sp
                for tau in range(2):
                    for p in range(2):
                        x_ = accn(re_, tau) + 2 * p; y_ = accn(im_, tau) + 2 * p
                        a('v_cvt_pk_bf16_f32 v%d, v%d, v%d' % (ZR + 2 * tau + p, x_, x_ + 1))
                        a('v_cvt_pk_bf16_f32 v%d, v%d, v%d' % (ZI + 2 * tau + p, y_, y_ + 1))
                        a('v_cvt_pk_bf16_f32 v%d, -v%d, -v%d' % (NZ + 2 * tau + p, x_, x_ + 1))
                O = ACC + 32 + 16 * sp
                for i in range(2):
                    a('%s %s, %s, %s, 0' % (MF16, V(O + 8 * i, 4), V(ZR, 4), V(MF + 4 * i, 4)))
                    a('%s %s, %s, %s, 0' % (MF16, V(O + 4 + 8 * i, 4), V(ZI, 4), V(MF + 4 * i, 4)))
                for i in range(2):
                    a('%s %s, %s, %s, %s' % (MF16, V(O + 8 * i, 4), V(ZI, 4), V(MF + 8 + 4 * i, 4), V(O + 8 * i, 4)))
                    a('%s %s, %s, %s, %s' % (MF16, V(O + 4 + 8 * i, 4), V(NZ, 4), V(MF + 8 + 4 * i, 4), V(O + 4 + 8 * i, 4)))
            a('v_lshrrev_b32 v10, 2, v2'); a('v_and_b32 v10, 3, v10')
            a('v_lshlrev_b32 v10, 12, v10')
            a('v_lshl_add_u32 v10, v4, 6, v10')
            a('v_and_b32 v11, 3, v2')
            a('v_lshl_add_u32 v10, v11, 4, v10')
            a('s_lshl_b32 s52, s7, 14'); a('s_lshl_b32 s53, s6, 10'); a('s_add_u32 s52, s52, s53')
            a('v_add_u32 v10, s52, v10')
            a('v_lshlrev_b32 v11, 12, v4')
            a('v_lshl_add_u32 v11, v3, 4, v11')
            a('s_sub_u32 s55, s44, 11'); a('s_lshl_b32 s55, s55, 2'); a('s_lshl_b32 s52, s7, 1'); a('s_add_u32 s55, s55, s52'); a('s_lshr_b32 s52, s6, 1'); a('s_add_u32 s55, s55, s52')
            a('s_lshl_b32 s52, s55, 17'); a('s_and_b32 s53, s6, 1'); a('s_lshl_b32 s53, s53, 16'); a('s_add_u32 s52, s52, s53')
            a('s_lshl_b32 s53, s43, 8'); a('s_add_u32 s52, s52, s53'); a('s_add_u32 s52, s52, %d' % G.AB_OFF)
            a('s_cmp_gt_u32 s55, 16'); a('s_cselect_b32 s52, 0x7f000000, s52')
            for sp in range(2):
                O = ACC + 32 + 16 * sp
                for i in range(2):
                    o = XF + 8 * sp + 4 * i
                    for p in range(4):
                        a('v_cvt_pk_bf16_f32 v%d, v%d, v%d' % (o + p, O + 8 * i + 2 * p, O + 8 * i + 2 * p + 1))
                    a('ds_write_b128 v12, %s offset:%d' % (V(o, 4), sp * 2048 + i * 1024))
            a('s_waitcnt lgkmcnt(0)')
            a('s_barrier')
            for q in range(4): a('ds_read_b128 %s, v10 offset:%d' % (V(BF + 4 * q, 4), q * 256))
            for q in range(4):
                a('s_waitcnt lgkmcnt(%d)' % (3 - q))
                a('buffer_store_dwordx4 %s, v11, %s, s52 offen%s' % (V(BF + 4 * q, 4), srd(G.S_WS), SC()))
                if q < 3: a('s_add_u32 s52, s52, 16384')
    a('s_cmp_ge_u32 s44, 11')
    a('s_cbranch_scc1 L_g1_S')
    q0 = list(vm.q)
    a('s_lshl_b32 s52, s3, 3')
    a('v_add_u32 v11, s52, v4')
    a('s_mov_b32 s52, 2752')
    a('v_mul_lo_u32 v11, v11, s52')
    a('s_lshl_b32 s52, s44, 8')
    a('v_add_u32 v11, s52, v11')
    a('s_and_b32 s52, s3, 1'); a('s_lshl_b32 s52, s52, 3')
    a('v_lshlrev_b32 v10, 1, v4')
    a('v_xor_b32 v10, v10, v3')
    a('v_xor_b32 v10, s52, v10')
    a('v_lshl_add_u32 v%d, v10, 4, v11' % VWO)
    a('s_mov_b32 s50, s4')
    loads('F', 0)
    common_setup('F')
    loads('F', 1)
    hooks('F', 'start')
    loads('F', 2)
    ST_('issued')
    kloop('F'); ST_('kloop')
    epilogue('F')
    a.label('L_g1_S')
    vm.q = list(q0)
    loads('S', 0); loads('S', 1); loads('S', 2)
    ST_('issued')
    common_setup('S')
    a('v_and_b32 v9, 255, v0')
    a('s_sub_u32 s55, s44, 11'); a('s_lshl_b32 s55, s55, 6'); a('s_lshl_b32 s52, s7, 5'); a('s_add_u32 s55, s55, s52')
    a('v_cvt_f32_u32 v10, v9')
    a('v_mul_f32 v10, %s, v10' % fl(1 / 512))
    a('v_cos_f32 v12, v10'); a('v_sin_f32 v13, v10')
    a('v_and_b32 v11, 3, v9'); a('v_lshrrev_b32 v14, 1, v9'); a('v_and_b32 v14, 4, v14'); a('v_or_b32 v11, v11, v14')
    a('s_lshl_b32 s52, s7, 2')
    a('v_xor_b32 v11, s52, v11')
    a('v_lshlrev_b32 v11, 5, v11'); a('v_lshl_add_u32 v11, v9, 8, v11')
    for st in range(2):
        a('v_mul_u32_u24 v14, s55, v9'); a('v_and_b32 v14, 511, v14'); a('v_cvt_f32_u32 v14, v14'); a('v_mul_f32 v14, %s, v14' % fl(1 / 512))
        if st < 1: a('s_add_u32 s55, s55, 16')
        P = [16, 18]
        O = BF + 16 * st
        a('v_cos_f32 v16, v14'); a('v_sin_f32 v17, v14')
        for i in range(16):
            cur, nxt = P[i & 1], P[(i + 1) & 1]
            if i < 15:
                a('v_pk_mul_f32 v[20:21], v[%d:%d], v[12:13] op_sel_hi:[1,0]' % (cur, cur + 1))
                if i & 1:
                    a('v_cvt_pk_bf16_f32 v%d, v%d, v%d' % (O + (i >> 1), nxt, cur))
                    a('v_cvt_pk_bf16_f32 v%d, -v%d, -v%d' % (O + 8 + (i >> 1), nxt + 1, cur + 1))
                a('v_pk_fma_f32 v[%d:%d], v[%d:%d], v[12:13], v[20:21] op_sel:[1,1,0] op_sel_hi:[0,1,1] neg_lo:[1,0,0]' % (nxt, nxt + 1, cur, cur + 1))
            else:
                a('v_cvt_pk_bf16_f32 v%d, v%d, v%d' % (O + 7, nxt, cur))
                a('v_cvt_pk_bf16_f32 v%d, -v%d, -v%d' % (O + 15, nxt + 1, cur + 1))
        a('v_xor_b32 v14, %d, v11' % ((2 * st) << 5))
        a('v_xor_b32 v15, %d, v11' % ((2 * st + 1) << 5))
        a('ds_write_b128 v14, %s' % V(O, 4)); a('ds_write_b128 v14, %s offset:16' % V(O + 4, 4))
        a('ds_write_b128 v15, %s' % V(O + 8, 4)); a('ds_write_b128 v15, %s offset:16' % V(O + 12, 4))
    a('s_lshl_b32 s76, s7, 10'); a('s_add_u32 s76, s76, s45')
    a('s_cmp_eq_u32 s7, 0'); a('s_cselect_b32 s77, 0.5, -0.5')
    for i in range(2):
        F_ = FILL.append
        F_('v_add_u32 v10, %d, v3' % (16 * i))
        F_('v_lshl_add_u32 v11, v4, 8, s76')
        F_('v_mul_u32_u24 v11, v10, v11')
        F_('v_and_b32 v11, 2047, v11')
        F_('v_cvt_f32_u32 v11, v11'); F_('v_cvt_f32_u32 v10, v10')
        F_('v_mul_f32 v11, %s, v11' % fl(1 / 2048))
        F_('v_fma_f32 v13, v10, s77, v11')
        F_('v_mul_f32 v10, %s, v10' % fl(1 / 32))
        for j in range(8):
            b_ = 'v11' if j < 4 else 'v13'
            jj = j & 3
            if jj: F_('v_fmamk_f32 v12, v10, %s, %s' % (fl(float(jj)), b_))
            if jj or j >= 4: F_('v_fract_f32 v12, %s' % ('v12' if jj else b_))
            src = 'v12' if (jj or j >= 4) else 'v11'
            F_('v_cos_f32 v%d, %s' % (16 + j, src)); F_('v_sin_f32 v%d, %s' % (24 + j, src))
        for p in range(4):
            F_('v_cvt_pk_bf16_f32 v%d, v%d, v%d' % (MF + 4 * i + p, 16 + 2 * p, 17 + 2 * p))
            F_('v_cvt_pk_bf16_f32 v%d, v%d, v%d' % (MF + 8 + 4 * i + p, 24 + 2 * p, 25 + 2 * p))
    hooks('S', 'start')
    ST_('gen')
    kloop('S'); ST_('kloop')
    epilogue('S')
```

```python
import sys, struct, math
sys.path.insert(0, 'gen')
from asmlib import *

NAME = 'parallel_sum__spectral_gfnet__dense_activation_silu__prompt'
HF_OFF = 0
AB_OFF = 6 << 20
DB_OFF = 9 << 20
CNT_OFF = 12 << 20
STAMP_OFF = 13 << 20
WS_BYTES = 14 << 20
MODE = 'multi'
STAMP = False
LOG2E = 1.4426950408889634

def f2u(x): return struct.unpack('<I', struct.pack('<f', x))[0]
def hx(x): return '0x%08x' % (x & 0xffffffff)
def fl(x): return hx(f2u(x))
S_X, S_W1, S_W2, S_WS, S_OUT, S_WR, S_WI, S_DBG = 8, 12, 16, 20, 24, 28, 32, 36
def srd(n): return 's[%d:%d]' % (n, n + 3)
def SC(): return ' sc1' if MODE == 'fused' else ''
MF16 = 'v_mfma_f32_16x16x32_bf16'

class VM:
    def __init__(self, a): self.a = a; self.q = []
    def issue(self, tag): self.q.append(tag)
    def wait(self, tags):
        idx = [i for i, t in enumerate(self.q) if t in tags]
        if not idx: return
        n = len(self.q) - 1 - max(idx)
        assert n <= 63
        self.a('s_waitcnt vmcnt(%d)' % n)
        self.q = self.q[max(idx) + 1:]
    def drain(self):
        self.a('s_waitcnt vmcnt(0)'); self.q = []

class Stamps:
    def __init__(self, a, kid): self.a = a; self.kid = kid; self.names = []
    def __call__(self, name):
        if not STAMP: return
        a = self.a
        if name not in self.names: self.names.append(name)
        k = self.names.index(name)
        assert k < 18, self.names
        a('s_memtime s[78:79]'); a('s_waitcnt lgkmcnt(0)'); a('s_mov_b32 s%d, s78' % (80 + k))
    def start(self):
        if not STAMP: return
        a = self.a
        for k in range(20): a('s_mov_b32 s%d, 0' % (80 + k))
        a('s_memrealtime s[78:79]'); a('s_waitcnt lgkmcnt(0)'); a('s_mov_b32 s98, s78')
        self('start')
    def end(self):
        if not STAMP: return
        a = self.a
        self('end')
        a('s_memrealtime s[78:79]'); a('s_waitcnt lgkmcnt(0)'); a('s_mov_b32 s99, s78')
        a('s_lshl_b32 s78, s2, 3'); a('s_add_u32 s78, s78, s3'); a('s_lshl_b32 s78, s78, 7'); a('s_add_u32 s78, s78, %d' % (STAMP_OFF + self.kid * 262144))
        for k in range(20): a('v_writelane_b32 v255, s%d, %d' % (80 + k, k))
        a('v_lshlrev_b32 v254, 2, v2')
        a('s_mov_b64 exec, 0xfffff')
        a('buffer_store_dword v255, v254, %s, s78 offen' % srd(S_WS))
        a('s_mov_b64 exec, -1')

VL16 = 5
def prologue(a, exit_label):
    a('s_cmp_ge_u32 s2, 256')
    a('s_cbranch_scc1 %s' % exit_label)
    a('s_load_dwordx4 s[40:43], s[0:1], 0')
    a('s_load_dwordx2 s[44:45], s[0:1], 16')
    a('s_load_dwordx8 s[48:55], s[0:1], 32')
    a('s_load_dwordx2 s[56:57], s[0:1], 64')
    a('v_lshrrev_b32 v1, 6, v0')
    a('v_and_b32 v2, 63, v0')
    a('v_readfirstlane_b32 s3, v1')
    a('v_and_b32 v3, 15, v2')
    a('v_lshrrev_b32 v4, 4, v2')
    a('v_lshlrev_b32 v%d, 4, v2' % VL16)
    a('s_and_b32 s4, s2, 7')
    a('s_lshr_b32 s5, s2, 3')
    a('s_and_b32 s6, s3, 3')
    a('s_lshr_b32 s7, s3, 2')
    a('s_waitcnt lgkmcnt(0)')
    for home, lo, nbytes in ((S_X, 40, 2 << 20), (S_W1, 48, 512 * 2752), (S_WS, 56, WS_BYTES), (S_W2, 50, 1376 * 1024), (S_WR, 42, 2048 * 514), (S_WI, 44, 2048 * 514),
                             (S_OUT, 52, 2 << 20), (S_DBG, 54, 256)):
        a('s_mov_b32 s%d, s%d' % (home, lo))
        a('s_and_b32 s%d, s%d, 0xffff' % (home + 1, lo + 1))
        a('s_mov_b32 s%d, %s' % (home + 2, hx(nbytes)))
        a('s_mov_b32 s%d, 0x00020000' % (home + 3))

def rbf16(a, v, tmp):
    a('v_cvt_pk_bf16_f32 %s, %s, %s' % (tmp, v, v))
    a('v_lshlrev_b32 %s, 16, %s' % (v, tmp))

SLOT = 16384
SM = 8 * SLOT
FT = 9 * SLOT
LFLAG = SM + 2048

def gen_ftab(a):
    a('s_lshr_b32 s52, s3, 1'); a('s_lshl_b32 s52, s52, 4')
    a('s_and_b32 s53, s3, 1'); a('s_lshl_b32 s53, s53, 5')
    a('v_add_u32 v10, s52, v3')
    a('v_lshl_add_u32 v11, v4, 2, s53')
    a('v_mul_u32_u24 v11, v10, v11')
    a('v_and_b32 v11, 63, v11')
    a('v_cvt_f32_u32 v11, v11'); a('v_cvt_f32_u32 v10, v10')
    a('v_mul_f32 v11, %s, v11' % fl(1 / 64)); a('v_mul_f32 v10, %s, v10' % fl(1 / 64))
    for j in range(8):
        jj = (j & 3) + 16 * (j >> 2)
        if jj:
            a('v_fmamk_f32 v12, v10, %s, v11' % fl(float(jj)))
            a('v_fract_f32 v12, v12')
        src = 'v12' if jj else 'v11'
        a('v_cos_f32 v%d, %s' % (16 + j, src)); a('v_sin_f32 v%d, %s' % (24 + j, src))
    for p in range(4):
        a('v_cvt_pk_bf16_f32 v%d, v%d, v%d' % (32 + p, 16 + 2 * p, 17 + 2 * p))
        a('v_cvt_pk_bf16_f32 v%d, v%d, v%d' % (36 + p, 24 + 2 * p, 25 + 2 * p))
    a('v_lshlrev_b32 v10, 4, v0')
    a('v_add_u32 v10, %d, v10' % FT)
    a('ds_write_b128 v10, v[32:35]')
    a('ds_write_b128 v10, v[36:39] offset:8192')

S_TMP = 64
def p2_setup(a):
    a('s_lshl_b32 s100, s4, 2'); a('s_lshr_b32 s52, s5, 3'); a('s_add_u32 s100, s100, s52')
    a('s_and_b32 s52, s5, 7'); a('s_lshl_b32 s47, s52, 1'); a('s_add_u32 s47, s47, s3')
    a('s_cmp_lt_u32 s3, 2'); a('s_cselect_b32 s48, 1, 0')
    a('s_cmp_eq_u32 s47, 16'); a('s_cselect_b32 s53, 1, 0'); a('s_cmp_eq_u32 s3, 2'); a('s_cselect_b32 s53, s53, 0')
    a('s_or_b32 s48, s48, s53')
    a('s_lshl_b32 s51, s47, 5'); a('s_add_u32 s51, s51, s100')
    a('s_lshl_b32 s49, s3, 12'); a('s_add_u32 s49, s49, %d' % (SM + 4096))

WRAW = 200
def p2_wloads(a):
    a('v_lshrrev_b32 v10, 1, v2')
    a('v_lshl_add_u32 v10, v10, 5, s100')
    a('s_mov_b32 s53, 514')
    a('v_mul_lo_u32 v10, v10, s53')
    a('v_and_b32 v11, 1, v2')
    a('v_lshl_add_u32 v10, v11, 4, v10')
    a('s_lshl_b32 s52, s47, 5')
    a('s_cmp_eq_u32 s47, 16'); a('s_cselect_b32 s53, 2, 0'); a('s_sub_u32 s52, s52, s53')
    a('s_add_u32 s53, s52, %d' % (1024 * 514))
    for ar, S_ in enumerate((S_WR, S_WI)):
        for z in range(2):
            a('buffer_load_dwordx4 %s, v10, %s, s%d offen' % (V(WRAW + 8 * ar + 4 * z, 4), srd(S_), 52 + z))

def p2_wtrans(a):
    a('v_add_u32 v12, s49, v%d' % VL16)
    a('s_cmp_eq_u32 s47, 16'); a('s_cselect_b32 s52, 16, 0')
    for q in range(4): a('v_lshrrev_b32 v%d, s52, v%d' % (WRAW + 4 * q, WRAW + 4 * q))
    for q in range(4): a('ds_write_b128 v12, %s offset:%d' % (V(WRAW + 4 * q, 4), q * 1024))
    a('v_lshrrev_b32 v10, 2, v3'); a('v_lshl_add_u32 v10, v4, 2, v10'); a('v_lshlrev_b32 v10, 5, v10')
    a('v_and_b32 v11, 3, v2'); a('v_lshl_add_u32 v10, v11, 3, v10'); a('v_add_u32 v10, s49, v10')
    a('s_waitcnt lgkmcnt(0)')
    for ar in range(2):
        for i in range(4):
            a('ds_read_b64_tr_b16 %s, v10 offset:%d' % (V(WRAW + 8 * ar + 2 * i, 2), ar * 2048 + i * 512))
    a('s_cmp_eq_u32 s47, 16'); a('s_cselect_b32 s52, 0, -1')
    a('v_mov_b32 v11, s52'); a('v_cmp_eq_u32 vcc, 0, v3'); a('v_cndmask_b32 v11, v11, -1, vcc')
    a('v_and_b32 v12, 0xffff0000, v11')
    a('s_waitcnt lgkmcnt(0)')
    for p in range(16):
        a('v_lshlrev_b32 v%d, 16, v%d' % (160 + 2 * p, WRAW + p))
        a('v_and_b32 v%d, v12, v%d' % (161 + 2 * p, WRAW + p))
        a('v_and_b32 v%d, v11, v%d' % (160 + 2 * p, 160 + 2 * p))

def p2_aload(a):
    a('s_lshl_b32 s52, s51, 12'); a('s_add_u32 s52, s52, %d' % AB_OFF)
    a('s_mov_b32 m0, s49')
    for z in range(4):
        a('buffer_load_dwordx4 v%d, %s, s52 offen offset:%d%s lds' % (VL16, srd(S_WS), z * 1024, SC()))

def p2_fread(a):
    CF, SF = 64, 96
    a('v_add_u32 v12, %d, v%d' % (FT, VL16))
    for fi in range(8): a('ds_read_b128 %s, v12 offset:%d' % (V(CF + 4 * fi, 4), fi * 1024))
    a('s_waitcnt lgkmcnt(4)')
    for fi in range(8): a('ds_read_b128 %s, v12 offset:%d' % (V(SF + 4 * fi, 4), 8192 + fi * 1024))

def p2_compute(a):
    CF, SF = 64, 96
    a('v_lshrrev_b32 v10, 2, v3')
    a('v_lshl_add_u32 v10, v4, 2, v10')
    a('v_lshlrev_b32 v10, 6, v10')
    a('v_and_b32 v11, 3, v2')
    a('v_lshl_add_u32 v10, v11, 4, v10')
    a('v_add_u32 v10, s49, v10')
    a('s_waitcnt vmcnt(0) lgkmcnt(0)')
    AR, AI, NAR = 16, 24, 32
    for ks in range(2):
        for h2 in range(2):
            a('ds_read_b64_tr_b16 %s, v10 offset:%d' % (V(AR + 4 * ks + 2 * h2, 2), ks * 2048 + h2 * 1024))
            a('ds_read_b64_tr_b16 %s, v10 offset:%d' % (V(AI + 4 * ks + 2 * h2, 2), ks * 2048 + h2 * 1024 + 8))
    a('s_waitcnt lgkmcnt(0)')
    for p in range(8): a('v_xor_b32 v%d, 0x80008000, v%d' % (NAR + p, AR + p))
    XR, XI = 128, 144
    def C(i, ks): return V(CF + (i * 2 + ks) * 4, 4)
    def S(i, ks): return V(SF + (i * 2 + ks) * 4, 4)
    for i in range(4):
        for ks in range(2):
            a('%s %s, %s, %s, %s' % (MF16, V(XR + 4 * i, 4), C(i, ks), V(AR + 4 * ks, 4), '0' if ks == 0 else V(XR + 4 * i, 4)))
            a('%s %s, %s, %s, %s' % (MF16, V(XI + 4 * i, 4), C(i, ks), V(AI + 4 * ks, 4), '0' if ks == 0 else V(XI + 4 * i, 4)))
            a('%s %s, %s, %s, %s' % (MF16, V(XR + 4 * i, 4), S(i, ks), V(AI + 4 * ks, 4), V(XR + 4 * i, 4)))
            a('%s %s, %s, %s, %s' % (MF16, V(XI + 4 * i, 4), S(i, ks), V(NAR + 4 * ks, 4), V(XI + 4 * i, 4)))
    VR, VI, NVI = 40, 48, 56
    for e in range(16):
        tr, ti = 192 + (e & 3), 196 + (e & 3)
        a('v_mul_f32 v%d, v%d, v%d' % (tr, XR + e, 160 + e))
        a('v_mul_f32 v%d, v%d, v%d' % (ti, XR + e, 176 + e))
        a('v_fma_f32 v%d, -v%d, v%d, v%d' % (tr, XI + e, 176 + e, tr))
        a('v_fmac_f32 v%d, v%d, v%d' % (ti, XI + e, 160 + e))
        if e & 1:
            p = e >> 1
            a('v_cvt_pk_bf16_f32 v%d, v%d, v%d' % (VR + p, tr - 1, tr))
            a('v_cvt_pk_bf16_f32 v%d, v%d, v%d' % (VI + p, ti - 1, ti))
            a('v_cvt_pk_bf16_f32 v%d, -v%d, -v%d' % (NVI + p, ti - 1, ti))
    DR, DI = 128, 144
    a('v_lshlrev_b32 v10, 6, v3'); a('v_lshl_add_u32 v10, v4, 4, v10'); a('v_add_u32 v10, s49, v10')
    a('v_add_u32 v12, s49, v%d' % VL16)
    a('s_lshl_b32 s52, s47, 12'); a('s_lshl_b32 s53, s100, 6'); a('s_add_u32 s52, s52, s53'); a('s_add_u32 s52, s52, %d' % DB_OFF)
    a('s_mov_b32 s53, %d' % (17 * 4096))
    a('v_lshrrev_b32 v11, 3, v2')
    a('v_mul_lo_u32 v11, v11, s53')
    a('v_and_b32 v13, 4, v2')
    a('v_lshl_add_u32 v11, v13, 9, v11')
    a('v_and_b32 v13, 3, v2')
    a('v_lshl_add_u32 v11, v13, 4, v11')
    for i in range(4):
        for ks in range(2):
            a('%s %s, %s, %s, %s' % (MF16, V(DR + 4 * i, 4), V(VR + 4 * ks, 4), C(i, ks), '0' if ks == 0 else V(DR + 4 * i, 4)))
            a('%s %s, %s, %s, %s' % (MF16, V(DI + 4 * i, 4), V(VI + 4 * ks, 4), C(i, ks), '0' if ks == 0 else V(DI + 4 * i, 4)))
            a('%s %s, %s, %s, %s' % (MF16, V(DR + 4 * i, 4), V(NVI + 4 * ks, 4), S(i, ks), V(DR + 4 * i, 4)))
            a('%s %s, %s, %s, %s' % (MF16, V(DI + 4 * i, 4), V(VR + 4 * ks, 4), S(i, ks), V(DI + 4 * i, 4)))
    for i in range(4):
        for p in range(2):
            a('v_cvt_pk_bf16_f32 v%d, v%d, v%d' % (16 + 4 * i + p, DR + 4 * i + 2 * p, DR + 4 * i + 2 * p + 1))
            a('v_cvt_pk_bf16_f32 v%d, v%d, v%d' % (18 + 4 * i + p, DI + 4 * i + 2 * p, DI + 4 * i + 2 * p + 1))
        a('ds_write_b128 v10, %s offset:%d' % (V(16 + 4 * i, 4), i * 1024))
    a('s_waitcnt lgkmcnt(0)')
    for q in range(4): a('ds_read_b128 %s, v12 offset:%d' % (V(32 + 4 * q, 4), q * 1024))
    for q in range(4):
        a('s_waitcnt lgkmcnt(%d)' % (3 - q))
        a('buffer_store_dwordx4 %s, v11, %s, s52 offen%s' % (V(32 + 4 * q, 4), srd(S_WS), SC()))
        if q < 3: a('s_add_u32 s52, s52, %d' % (8 * 17 * 4096))

CSLOT = [4, 5, 6, 7, 0, 1, 2, 3, 8, 9, 4]
GSLOT = [5, 6, 7, 0, 1]
DSLOT = [2, 3, 8, 9, 1]
def g_addr(bq): return GSLOT[bq] * SLOT
def d_addr(bq): return DSLOT[bq] * SLOT + (4096 if bq == 4 else 0)
HFR, AC, AF = 64, 152, 176
MC, MS, NMS, XV, TB = 208, 212, 216, 220, 224
GP = 232
VW2, VX2, VGW = 247, 7, 8
HPD = 4

def g2_setup(a):
    a('s_lshl_b32 s68, s4, 2'); a('s_and_b32 s52, s5, 3'); a('s_add_u32 s68, s68, s52')
    a('s_lshr_b32 s69, s5, 2')
    a('s_lshl_b32 s70, s68, 1'); a('s_lshr_b32 s52, s6, 1'); a('s_add_u32 s70, s70, s52')
    a('s_and_b32 s71, s6, 1')
    a('s_lshl_b32 s72, s70, 1'); a('s_add_u32 s72, s72, s71'); a('s_mul_i32 s72, s72, 43'); a('s_add_u32 s72, s72, s7'); a('s_lshl_b32 s72, s72, 10')
    a('s_lshl_b32 s73, s3, 11')
    a('s_mul_i32 s74, s68, %d' % (17 * 4096)); a('s_add_u32 s74, s74, %d' % DB_OFF)
    a('s_add_u32 s75, s69, s4'); a('s_cmp_ge_u32 s75, 11'); a('s_cselect_b32 s52, 11, 0'); a('s_sub_u32 s75, s75, s52')

def chunk_of(a, p):
    if p == 0: a('s_mov_b32 s52, s75'); return
    a('s_add_u32 s52, s75, %d' % p); a('s_cmp_ge_u32 s52, 11'); a('s_cselect_b32 s53, 11, 0'); a('s_sub_u32 s52, s52, s53')

def g2_w2addr(a, vreg):
    a('v_lshrrev_b32 v10, 3, v2')
    a('v_and_b32 v11, 7, v2')
    a('v_and_b32 v12, 6, v10')
    a('v_xor_b32 v11, v11, v12')
    a('s_lshl_b32 s52, s3, 14'); a('s_lshl_b32 s53, s69, 7'); a('s_add_u32 s52, s52, s53')
    a('v_lshlrev_b32 v10, 10, v10')
    a('v_lshl_add_u32 v10, v11, 4, v10')
    a('v_add_u32 v%d, s52, v10' % vreg)

def dma_w2(a, vm, c, vreg):
    chunk_of(a, c)
    a('s_lshl_b32 s52, s52, 17')
    for z in range(2):
        if z: a('s_add_u32 s52, s52, 8192')
        a('s_add_u32 m0, s73, %d' % (CSLOT[c] * SLOT + z * 1024))
        a('buffer_load_dwordx4 v%d, %s, s52 offen lds' % (vreg, srd(S_W2)))
        vm.issue(('c', c))

def g2_hload(a, vm, c):
    chunk_of(a, c)
    a('s_add_u32 s53, s52, s7')
    a('s_lshl_b32 s52, s52, 12'); a('s_add_u32 s52, s52, s72')
    a('s_cmp_eq_u32 s53, 11'); a('s_cselect_b32 s53, 0x7f000000, s52')
    for z in range(2):
        i = 2 * c + z
        a('buffer_load_dwordx4 %s, v%d, %s, s%d offen offset:%d%s' % (V(HFR + 4 * i, 4), VL16, srd(S_WS), 52 + z, 2048 * z, SC()))
        vm.issue(('h', c))

def g2_consts(a, vm):
    a('s_lshl_b32 s52, s71, 20'); a('s_lshl_b32 s53, s70, 10'); a('s_add_u32 s52, s52, s53')
    a('s_lshl_b32 s53, s69, 7'); a('s_add_u32 s52, s52, s53'); a('s_lshl_b32 s53, s7, 6'); a('s_add_u32 s52, s52, s53')
    a('v_lshlrev_b32 v%d, 16, v3' % VX2)
    a('v_lshl_add_u32 v%d, v4, 3, v%d' % (VX2, VX2))
    a('v_add_u32 v%d, s52, v%d' % (VX2, VX2))
    for i in range(2):
        a('buffer_load_dwordx2 %s, v%d, %s, 0 offen offset:%d' % (V(XV + 2 * i, 2), VX2, srd(S_X), 32 * i))
        vm.issue('x')
    a('v_lshrrev_b32 v10, 2, v3')
    a('v_lshl_add_u32 v10, v4, 2, v10')
    a('v_and_b32 v11, 6, v10')
    a('v_and_b32 v12, 3, v2')
    a('v_lshrrev_b32 v13, 1, v12')
    a('v_xor_b32 v11, v11, v13')
    a('v_and_b32 v12, 1, v12')
    a('v_lshlrev_b32 v10, 7, v10')
    a('v_lshl_add_u32 v10, v12, 3, v10')
    a('s_lshl_b32 s52, s7, 12')
    a('v_add_u32 v10, s52, v10')
    for mt in range(4):
        a('v_xor_b32 v12, %d, v11' % (2 * mt))
        a('v_lshl_add_u32 v%d, v12, 4, v10' % (TB + mt))
        a('v_add_u32 v%d, 0x10000, v%d' % (TB + 4 + mt, TB + mt))
        a('v_add_u32 v%d, 0x20000, v%d' % (240 + mt, TB + mt))
    a('s_lshl_b32 s52, s71, 10'); a('s_add_u32 s52, s52, s70')
    a('v_lshl_add_u32 v10, v3, 6, s52')
    a('v_lshlrev_b32 v11, 3, v4')
    a('v_mul_u32_u24 v11, v10, v11')
    a('v_and_b32 v11, 2047, v11')
    a('v_cvt_f32_u32 v11, v11'); a('v_cvt_f32_u32 v10, v10')
    a('v_mul_f32 v11, %s, v11' % fl(1 / 2048)); a('v_mul_f32 v10, %s, v10' % fl(1 / 2048))
    for j in range(8):
        if j:
            a('v_add_f32 v11, v11, v10'); a('v_fract_f32 v11, v11')
        a('v_cos_f32 v%d, v11' % (16 + j)); a('v_sin_f32 v%d, v11' % (24 + j))
    for p in range(4):
        a('v_cvt_pk_bf16_f32 v%d, v%d, v%d' % (MC + p, 16 + 2 * p, 17 + 2 * p))
        a('v_cvt_pk_bf16_f32 v%d, v%d, v%d' % (MS + p, 24 + 2 * p, 25 + 2 * p))
        a('v_cvt_pk_bf16_f32 v%d, -v%d, -v%d' % (NMS + p, 24 + 2 * p, 25 + 2 * p))
    a('s_lshl_b32 s52, s69, 6'); a('s_lshl_b32 s53, s6, 4'); a('s_add_u32 s52, s52, s53')
    a('v_add_u32 v10, s52, v3')
    a('s_lshl_b32 s52, s7, 4')
    a('v_lshl_add_u32 v11, v4, 2, s52')
    a('v_mul_u32_u24 v11, v10, v11'); a('v_and_b32 v11, 511, v11')
    a('v_lshlrev_b32 v12, 5, v10'); a('v_and_b32 v12, 511, v12')
    a('v_cvt_f32_u32 v10, v10'); a('v_cvt_f32_u32 v11, v11'); a('v_cvt_f32_u32 v12, v12')
    for r in (10, 11, 12): a('v_mul_f32 v%d, %s, v%d' % (r, fl(1 / 512), r))
    a('v_cos_f32 v%d, v11' % GP); a('v_sin_f32 v%d, v11' % (GP + 1))
    a('v_cos_f32 v%d, v10' % (GP + 2)); a('v_sin_f32 v%d, v10' % (GP + 3))
    a('v_cos_f32 v%d, v12' % (GP + 4)); a('v_sin_f32 v%d, v12' % (GP + 5))
    gs = -LOG2E * 2.0 ** -19
    a('v_mul_f32 v%d, %s, v%d' % (GP, fl(gs), GP)); a('v_mul_f32 v%d, %s, v%d' % (GP + 1, fl(gs), GP + 1))
    a('v_cmp_eq_u32 vcc, 0, v4')
    a('s_cmp_eq_u32 s7, 0'); a('s_cselect_b32 s52, 0.5, 1.0')
    a('v_mov_b32 v10, 1.0'); a('v_mov_b32 v11, s52')
    a('v_cndmask_b32 v%d, v10, v11, vcc' % (GP + 6))
    a('v_mov_b32 v10, 0'); a('v_mov_b32 v11, 0.5')
    a('v_cndmask_b32 v%d, v10, v11, vcc' % (GP + 7))
    a('s_lshl_b32 s52, s7, 12'); a('s_lshl_b32 s53, s6, 10'); a('s_add_u32 s52, s52, s53')
    a('v_add_u32 v%d, s52, v%d' % (VGW, VL16))
    a('v_add_u32 v%d, 0x10000, v%d' % (VGW + 1, VGW))

def g_frag(a, bi):
    L = []
    c0, s0, cd, sd, cD, sD = range(GP, GP + 6)
    if bi == 8:
        L.append('v_mul_f32 v10, v%d, v%d' % (c0, GP + 7))
        L.append('v_mov_b32 v17, 0'); L.append('v_mov_b32 v18, 0'); L.append('v_mov_b32 v19, 0')
        L.append('v_cvt_pk_bf16_f32 v16, v10, v17')
    else:
        pc, ps = c0, s0
        for j in range(1, 4):
            nc, ns = 8 + 2 * j, 9 + 2 * j
            L.append('v_mul_f32 v%d, v%d, v%d' % (nc, pc, cd))
            L.append('v_mul_f32 v%d, v%d, v%d' % (ns, ps, cd))
            L.append('v_fma_f32 v%d, -v%d, v%d, v%d' % (nc, ps, sd, nc))
            L.append('v_fmac_f32 v%d, v%d, v%d' % (ns, pc, sd))
            pc, ps = nc, ns
        if bi == 0:
            L.append('v_mul_f32 v20, v%d, v%d' % (c0, GP + 6))
            L.append('v_cvt_pk_bf16_f32 v16, v20, v10')
        else:
            L.append('v_cvt_pk_bf16_f32 v16, v%d, v10' % c0)
        L.append('v_cvt_pk_bf16_f32 v17, v12, v14')
        L.append('v_cvt_pk_bf16_f32 v18, -v%d, -v11' % s0)
        L.append('v_cvt_pk_bf16_f32 v19, -v13, -v15')
        L.append('v_mul_f32 v20, v%d, v%d' % (c0, cD))
        L.append('v_mul_f32 v21, v%d, v%d' % (s0, cD))
        L.append('v_fma_f32 v20, -v%d, v%d, v20' % (s0, sD))
        L.append('v_fmac_f32 v21, v%d, v%d' % (c0, sD))
        L.append('v_mov_b32 v%d, v20' % c0); L.append('v_mov_b32 v%d, v21' % s0)
    off = g_addr(bi >> 1) + (bi & 1) * 8192
    hi = 0
    if off >= 65536: off -= 65536; hi = 1
    L.append('ds_write_b128 v%d, v[16:19] offset:%d' % (VGW + hi, off))
    return L

def g2_main(a, vm, ST_, poll_d, wait_d, late_w2):
    def dma_d(bq):
        n = 2 if bq < 4 else 1
        for z in range(n):
            if bq < 4:
                a('s_add_u32 s52, s74, s73')
                a('s_add_u32 s52, s52, %d' % (bq * SLOT + z * 1024))
                a('s_add_u32 m0, s73, %d' % (d_addr(bq) + z * 1024))
            else:
                a('s_lshl_b32 s53, s6, 10'); a('s_add_u32 s52, s74, s53'); a('s_add_u32 s52, s52, 65536')
                a('s_add_u32 m0, s53, %d' % d_addr(4))
            a('buffer_load_dwordx4 v%d, %s, s52 offen%s lds' % (VL16, srd(S_WS), SC()))
            vm.issue(('d', bq))
    def rd(i):
        c, z = i >> 1, i & 1
        off = CSLOT[c] * SLOT + z * 8192
        L = []
        for mt in range(4):
            for h2 in range(2):
                o = off + h2 * 2048
                base = TB + mt if o < 65536 else (TB + 4 + mt if o < 131072 else 240 + mt)
                L.append('ds_read_b64_tr_b16 %s, v%d offset:%d' % (V(AF + (i & 1) * 16 + mt * 4 + h2 * 2, 2), base, o & 65535))
        return L
    vm.wait({('c', 0), ('h', 0)}); a('s_waitcnt lgkmcnt(0)'); a('s_barrier')
    ST_('first2')
    for s in rd(0): a(s)
    for i in range(22):
        a('s_waitcnt lgkmcnt(0)')
        fill = []
        if i + 1 < 22:
            if (i + 1) % 2 == 0:
                c1 = (i + 1) // 2
                vm.wait({('c', c1), ('h', c1)})
                if c1 == 6: wait_d()
                a('s_barrier')
                cf = c1 - 1
                if c1 + HPD - 1 <= 10: g2_hload(a, vm, c1 + HPD - 1)
                late_w2(cf)
                if cf == 3: dma_w2(a, vm, 10, VW2)
                if cf == 4: poll_d()
                if cf == 5: dma_d(4)
                if cf >= 6: dma_d(cf - 6)
            fill = rd(i + 1)
        gl = []
        if 3 <= i <= 10: gl = g_frag(a, i - 3)
        mm = ['%s %s, %s, %s, %s' % (MF16, V(AC + 4 * mt, 4), V(AF + (i & 1) * 16 + mt * 4, 4), V(HFR + 4 * i, 4), '0' if i == 0 else V(AC + 4 * mt, 4)) for mt in range(4)]
        per = (len(gl) + 3) // 4
        for mt in range(4):
            a(mm[mt])
            for s in fill[2 * mt:2 * mt + 2]: a(s)
            for s in gl[per * mt:per * (mt + 1)]: a(s)
        if i == 11:
            a('s_cmp_eq_u32 s7, 0')
            a('s_cbranch_scc0 L_g2_g16')
            for s in g_frag(a, 8): a(s)
            a.label('L_g2_g16')
    ST_('ffn')
    a('s_lshl_b32 s52, s7, 12'); a('s_lshr_b32 s53, s6, 1'); a('s_lshl_b32 s53, s53, 11'); a('s_add_u32 s52, s52, s53')
    a('v_lshrrev_b32 v10, 2, v3')
    a('v_lshl_add_u32 v10, v4, 3, v10')
    a('v_lshlrev_b32 v10, 6, v10')
    a('v_and_b32 v11, 3, v2')
    a('v_lshl_add_u32 v10, v11, 4, v10')
    a('v_add_u32 v10, s52, v10')
    a('v_add_u32 v11, 0x20000, v10')
    a('s_lshl_b32 s52, s7, 12')
    a('v_add_u32 v12, s52, v%d' % VL16)
    a('v_add_u32 v13, 0x10000, v12')
    def sreads(bi):
        o = 16 + (bi & 1) * 24
        da = d_addr(bi >> 1) + (bi & 1) * 8192
        vb = 10
        if da >= 131072: da -= 131072; vb = 11
        assert da + 8192 <= 65536
        for h2 in range(2):
            a('ds_read_b64_tr_b16 %s, v%d offset:%d' % (V(o + 2 * h2, 2), vb, da + h2 * 256))
            a('ds_read_b64_tr_b16 %s, v%d offset:%d' % (V(o + 4 + 2 * h2, 2), vb, da + h2 * 256 + 8))
        ga = g_addr(bi >> 1) + (bi & 1) * 8192
        vb = 12
        if ga >= 65536: ga -= 65536; vb = 13
        for mt in range(4):
            a('ds_read_b128 %s, v%d offset:%d' % (V(o + 8 + 4 * mt, 4), vb, ga + mt * 1024))
    YA, YB, YF = 176, 180, 184
    def sblock(bi, nxt):
        o = 16 + (bi & 1) * 24
        Dr, Di = V(o, 4), V(o + 4, 4)
        a('s_waitcnt lgkmcnt(0)')
        a('%s %s, %s, %s, 0' % (MF16, V(YA, 4), Dr, V(MC, 4)))
        a('%s %s, %s, %s, 0' % (MF16, V(YB, 4), Di, V(MC, 4)))
        a('%s %s, %s, %s, %s' % (MF16, V(YA, 4), Di, V(NMS, 4), V(YA, 4)))
        a('%s %s, %s, %s, %s' % (MF16, V(YB, 4), Dr, V(MS, 4), V(YB, 4)))
        if nxt is not None: nxt()
        for p in range(4):
            a('v_cvt_pk_bf16_f32 v%d, v%d, v%d' % (YF + p, YA + 2 * p, YA + 2 * p + 1))
        for mt in range(4):
            a('%s %s, %s, %s, %s' % (MF16, V(AC + 4 * mt, 4), V(o + 8 + 4 * mt, 4), V(YF, 4), V(AC + 4 * mt, 4)))
    vm.wait({('d', 2)}); a('s_waitcnt lgkmcnt(0)'); a('s_barrier')
    sreads(0)
    for bi in range(8):
        def nxt():
            if bi + 1 == 6:
                vm.wait({('d', 3)}); a('s_barrier')
            sreads(bi + 1)
        sblock(bi, nxt)
    a('s_cmp_eq_u32 s7, 0')
    a('s_cbranch_scc0 L_g2_sp')
    sblock(8, None)
    a.label('L_g2_sp')
    ST_('spec')
    a('s_waitcnt lgkmcnt(0)')
    a('s_lshl_b32 s52, s6, 1'); a('s_add_u32 s53, s52, s7'); a('s_xor_b32 s52, s53, 1')
    a('s_lshl_b32 s52, s52, 11'); a('s_lshl_b32 s53, s53, 11')
    a('s_add_u32 s52, s52, %d' % (4 * SLOT)); a('s_add_u32 s53, s53, %d' % (4 * SLOT))
    a('v_add_u32 v10, s52, v%d' % VL16); a('v_add_u32 v11, s53, v%d' % VL16)
    a('s_mov_b32 s54, %s' % fl(-math.log(2.0)))
    a('s_cmp_eq_u32 s7, 0')
    a('s_cbranch_scc0 L_g2_f1')
    for kh in range(2):
        if kh: a.label('L_g2_f1')
        send = AC + 8 if kh == 0 else AC
        keep = AC if kh == 0 else AC + 8
        for i in range(2): a('ds_write_b128 v10, %s offset:%d' % (V(send + 4 * i, 4), i * 1024))
        a('s_waitcnt lgkmcnt(0)'); a('s_barrier')
        for i in range(2): a('ds_read_b128 %s, v11 offset:%d' % (V(16 + 4 * i, 4), i * 1024))
        for i in range(2):
            for p in range(2):
                a('v_lshlrev_b32 v%d, 16, v%d' % (32 + 4 * i + 2 * p, XV + 2 * i + p))
                a('v_and_b32 v%d, 0xffff0000, v%d' % (33 + 4 * i + 2 * p, XV + 2 * i + p))
        a('s_waitcnt lgkmcnt(0)')
        for i in range(2):
            for r in range(4):
                k0 = keep + 4 * i + r
                a('v_add_f32 v%d, v%d, v%d' % (k0, k0, 16 + 4 * i + r))
                a('v_fma_f32 v%d, v%d, s54, v%d' % (k0, k0, 32 + 4 * i + r))
            for p in range(2):
                a('v_cvt_pk_bf16_f32 v%d, v%d, v%d' % (26 + 2 * i + p, keep + 4 * i + 2 * p, keep + 4 * i + 2 * p + 1))
            a('buffer_store_dwordx2 %s, v%d, %s, 0 offen offset:%d' % (V(26 + 2 * i, 2), VX2, srd(S_OUT), 32 * i))
        ST_.end()
        a('s_endpgm')

def kd(name, vgpr):
    return '''.p2align 6
.amdhsa_kernel %s
  .amdhsa_next_free_vgpr %d
  .amdhsa_next_free_sgpr 102
  .amdhsa_accum_offset %d
  .amdhsa_group_segment_fixed_size 0
  .amdhsa_kernarg_size 72
  .amdhsa_user_sgpr_count 2
  .amdhsa_user_sgpr_kernarg_segment_ptr 1
  .amdhsa_system_sgpr_workgroup_id_x 1
.end_amdhsa_kernel
''' % (name, vgpr, (vgpr + 3) // 4 * 4)
def khead(a, n): a.raw('.globl %s\n.p2align 8\n.type %s,@function\n%s:' % (n, n, n))


def cnt_off(i): return CNT_OFF + i * 256
CA, CH, CD = 0, 64, 80

def poll(a, lab, soff, expected, vtmp='v10', vz='v9'):
    a.label(lab)
    a('buffer_load_dword %s, %s, %s, %s offen sc1' % (vtmp, vz, srd(S_WS), soff))
    a('s_waitcnt vmcnt(0)')
    a('v_readfirstlane_b32 s52, %s' % vtmp)
    a('s_cmp_ge_u32 s52, %d' % expected)
    a('s_cbranch_scc1 %s_ok' % lab)
    a('s_sleep 2')
    a('s_branch %s' % lab)
    a.label(lab + '_ok')

def main_fused(out):
    global MODE
    MODE = 'fused'
    import g1v6 as g1v5
    a = Asm()
    K = NAME + '_kernel'
    a.raw('; @launch grid=(256,1,1) block=(512,1,1) lds=163840')
    a.raw('.amdgcn_target "amdgcn-amd-amdhsa--gfx950"\n.text')
    khead(a, K); prologue(a, 'L_x')
    st = Stamps(a, 0); st.start()
    vm = VM(a)
    def hooks(ty, pt):
        if pt == 'start':
            a('v_mov_b32 v9, 0')
            a('s_or_b32 s52, s2, s3')
            a('s_cmp_lg_u32 s52, 0')
            a('s_cbranch_scc1 L_noinit_%s' % ty)
            a('v_lshlrev_b32 v10, 8, v2')
            a('s_mov_b32 s52, %d' % CNT_OFF)
            a('buffer_store_dword v9, v10, %s, s52 offen sc1' % srd(S_WS))
            a('s_add_u32 s52, s52, 16384')
            a('buffer_store_dword v9, v10, %s, s52 offen sc1' % srd(S_WS))
            a('v_mov_b32 v10, 1')
            a('s_waitcnt vmcnt(0)')
            a('s_mov_b64 exec, 1')
            a('buffer_store_dword v10, v9, %s, 0 offen sc1' % srd(S_DBG))
            a('s_mov_b64 exec, -1')
            a.label('L_noinit_%s' % ty)
            a('v_mov_b32 v10, %d' % LFLAG)
            a('ds_write_b32 v10, v9')
            a('ds_write_b32 v10, v9 offset:4')
            g2_setup(a); g2_w2addr(a, VW2)
            p2_setup(a)
            a('s_cmp_eq_u32 s48, 0')
            a('s_cbranch_scc1 L_now_%s' % ty)
            p2_wloads(a)
            a.label('L_now_%s' % ty)
            return
        plan = {'F': {'s6': [4, 5, 6], 's7': [7, 0, 1], 'kend': [2, 3]}, 'S': {'kend': [0, 1, 2, 3, 6, 7]}}[ty].get(pt, [])
        for c in plan: dma_w2(a, vm, c, VW2)
        if ty == 'S' and pt != 'kend':
            k = int(pt[1:]) - 1
            if k == 0:
                a('s_lshr_b32 s52, s5, 4'); a('s_mul_i32 s52, s52, 5'); a('s_add_u32 s52, s52, s44'); a('s_sub_u32 s52, s52, 11'); a('s_add_u32 s52, s52, s4')
                a('s_cmp_ge_u32 s52, 10'); a('s_cselect_b32 s53, 10, 0'); a('s_sub_u32 s52, s52, s53')
                a('s_lshl_b32 s52, s52, 3'); a('s_add_u32 s52, s52, s3'); a('s_mul_i32 s101, s52, 18432')
            if k < 6:
                for z in range(3):
                    a('buffer_load_dwordx4 v[216:219], v%d, %s, s101 offen offset:%d' % (VL16, srd(S_W2), z * 1024))
                    vm.issue('pf')
                a('s_add_u32 s101, s101, 3072')
        if pt == 'kend':
            a('v_mov_b32 v9, 0')
            a('buffer_load_dword v246, v9, %s, 0 offen sc1' % srd(S_DBG))
    def publish(uid, cnt_sgpr_code):
        a('s_cmp_lg_u32 s3, 0')
        a('s_cbranch_scc1 L_nopub%s' % uid)
        a('v_lshlrev_b32 v11, 11, v2')
        a('v_mov_b32 v10, 1')
        a('s_mov_b64 exec, 1')
        a.label('L_init_poll%s' % uid)
        a('v_readfirstlane_b32 s52, v246')
        a('s_cmp_lg_u32 s52, 0')
        a('s_cbranch_scc1 L_init_ok%s' % uid)
        a('buffer_load_dword v246, v9, %s, 0 offen sc1' % srd(S_DBG))
        a('s_waitcnt vmcnt(0)')
        a('s_branch L_init_poll%s' % uid)
        a.label('L_init_ok%s' % uid)
        cnt_sgpr_code()
        a('s_cmp_ge_u32 s44, 11'); a('s_cselect_b32 s54, 0xff, 1'); a('s_mov_b32 s55, 0')
        a('s_mov_b64 exec, s[54:55]')
        a('buffer_atomic_add v10, v11, %s, s52 offen sc1' % srd(S_WS))
        a('s_mov_b64 exec, -1')
        a.label('L_nopub%s' % uid)
    g1v5.g1_phase(a, st, vm, hooks, 'L_F_end')
    a.label('L_F_end')
    st('g1st')
    gen_ftab(a)
    a('s_cmp_eq_u32 s48, 0'); a('s_cbranch_scc1 L_nowt')
    p2_wtrans(a)
    a.label('L_nowt')
    a('v_mov_b32 v9, 0')
    a('s_waitcnt vmcnt(0) lgkmcnt(0)')
    a('s_barrier')
    st('pb')
    def cnt():
        a('s_sub_u32 s52, s44, 11'); a('s_add_u32 s53, s43, %d' % CH)
        a('s_cmp_ge_u32 s44, 11'); a('s_cselect_b32 s52, s52, s53')
        a('s_lshl_b32 s52, s52, 8'); a('s_add_u32 s52, s52, %d' % CNT_OFF)
    publish('P', cnt)
    def w2_loop(uid):
        a('s_cmp_lt_u32 s44, 11'); a('s_cbranch_scc1 L_w2l_%s' % uid)
        for c in (4, 5): dma_w2(a, VM(a), c, VW2)
        a.label('L_w2l_%s' % uid)
    a('s_cmp_eq_u32 s48, 0'); a('s_cbranch_scc1 L_nounit')
    p2_fread(a)
    a('v_mov_b32 v10, %d' % LFLAG)
    a.label('L_spinA')
    a('ds_read_b32 v11, v10 offset:4')
    a('s_waitcnt lgkmcnt(0)')
    a('v_readfirstlane_b32 s52, v11')
    a('s_cmp_lg_u32 s52, 0')
    a('s_cbranch_scc1 L_spinA_ok')
    a('s_sleep 1')
    a('s_branch L_spinA')
    a.label('L_spinA_ok')
    st('aok')
    p2_aload(a)
    w2_loop('u')
    g2_consts(a, VM(a))
    p2_compute(a)
    st('p2')
    a('s_branch L_waitH')
    a.label('L_nounit')
    a('s_cmp_lg_u32 s3, 6'); a('s_cbranch_scc1 L_f_h')
    a('s_and_b32 s52, s5, 7'); a('s_lshl_b32 s52, s52, 1')
    a('v_add_u32 v11, s52, v2'); a('v_lshrrev_b32 v11, 2, v11'); a('v_lshlrev_b32 v11, 8, v11')
    a('s_lshl_b32 s55, s4, 11'); a('s_add_u32 s55, s55, %d' % cnt_off(CA))
    a('s_cmp_eq_u32 s52, 14'); a('s_cselect_b32 s52, 7, 3'); a('s_mov_b32 s53, 0')
    a('s_mov_b64 exec, s[52:53]')
    a.label('L_pollA')
    a('buffer_load_dword v10, v11, %s, s55 offen sc1' % srd(S_WS))
    a('s_waitcnt vmcnt(0)')
    a('v_cmp_gt_u32 vcc, 16, v10')
    a('s_cmp_eq_u64 vcc, 0')
    a('s_cbranch_scc1 L_pollA_ok')
    a('s_sleep 2')
    a('s_branch L_pollA')
    a.label('L_pollA_ok')
    a('s_mov_b64 exec, -1')
    a('v_mov_b32 v10, %d' % LFLAG); a('v_mov_b32 v11, 1')
    a('ds_write_b32 v10, v11 offset:4')
    a.label('L_f_h')
    a('s_cmp_lg_u32 s3, 7'); a('s_cbranch_scc1 L_f_c')
    a('s_lshr_b32 s52, s68, 1'); a('s_lshl_b32 s52, s52, 8'); a('s_add_u32 s55, s52, %d' % cnt_off(CH))
    poll(a, 'L_pollH', 's55', 11)
    a('v_mov_b32 v10, %d' % LFLAG); a('v_mov_b32 v11, 1')
    a('ds_write_b32 v10, v11')
    a.label('L_f_c')
    w2_loop('n')
    g2_consts(a, VM(a))
    a.label('L_waitH')
    a('v_mov_b32 v10, %d' % LFLAG)
    a.label('L_spinH')
    a('ds_read_b32 v11, v10')
    a('s_waitcnt lgkmcnt(0)')
    a('v_readfirstlane_b32 s52, v11')
    a('s_cmp_lg_u32 s52, 0')
    a('s_cbranch_scc1 L_spinH_ok')
    a('s_sleep 1')
    a('s_branch L_spinH')
    a.label('L_spinH_ok')
    st('hok')
    vm.q = []
    for c in range(HPD): g2_hload(a, vm, c)
    qS = list(vm.q)
    vmF = VM(a); vmF.q = list(qS)
    a.label('L_g2')
    a('v_add_u32 v%d, 0x10000, v%d' % (VGW + 1, VGW))
    a('v_lshlrev_b32 v245, 8, v3')
    class Dual:
        def __init__(s_, m1, m2): s_.m = [m1, m2]
        def issue(s_, tag): [m.q.append(tag) for m in s_.m]
        def wait(s_, tags):
            ns = []
            for m in s_.m:
                idx = [i for i, t in enumerate(m.q) if t in tags]
                if idx:
                    ns.append(len(m.q) - 1 - max(idx)); m.q = m.q[max(idx) + 1:]
            if ns: a('s_waitcnt vmcnt(%d)' % min(ns))
    vm.q = qS
    dv = Dual(vm, vmF)
    def poll_d():
        a('s_cmp_lg_u32 s3, 7')
        def body():
            a('s_mov_b32 s52, %d' % cnt_off(CD))
            a('buffer_load_dword v244, v245, %s, s52 offen sc1' % srd(S_WS))
        a.skip('s_cbranch_scc1', 'L_pd1', body)
    def wait_d():
        a('s_cmp_lg_u32 s3, 7')
        a('s_cbranch_scc1 L_wd_ok')
        a('s_mov_b32 s52, %d' % cnt_off(CD))
        a('v_lshrrev_b32 v246, 3, v3'); a('v_lshlrev_b32 v246, 2, v246'); a('v_add_u32 v246, 32, v246')
        a.label('L_wd')
        a('s_waitcnt vmcnt(0)')
        a('v_cmp_lt_u32 vcc, v244, v246')
        a('s_cmp_eq_u64 vcc, 0')
        a('s_cbranch_scc1 L_wd_ok')
        a('s_sleep 1')
        a('buffer_load_dword v244, v245, %s, s52 offen sc1' % srd(S_WS))
        a('s_branch L_wd')
        a.label('L_wd_ok')
    def late_w2(cf):
        if cf == 0:
            a('s_cmp_eq_u32 s48, 0')
            a('s_cbranch_scc1 L_nod')
            a('s_and_b32 s52, s2, 15'); a('s_lshl_b32 s52, s52, 8'); a('s_add_u32 s52, s52, %d' % cnt_off(CD))
            a('v_mov_b32 v10, 0'); a('v_mov_b32 v11, 1')
            a('s_mov_b64 exec, 1')
            a('buffer_atomic_add v11, v10, %s, s52 offen sc1' % srd(S_WS))
            a('s_mov_b64 exec, -1')
            a.label('L_nod')
        if cf == 1: dma_w2(a, dv, 8, VW2)
        if cf == 2: dma_w2(a, dv, 9, VW2)
    g2_main(a, dv, st, poll_d, wait_d, late_w2)
    a.label('L_x'); a('s_endpgm')
    a.raw('.section .rodata,"a"')
    a.raw(kd(K, 256))
    open(out, 'w').write(a.text())
    print('lines', len(a.lines), 'nops', a.nops)
    if STAMP: print(','.join(st.names))

if __name__ == '__main__':
    import gen6 as gen5
    if 'stamp' in sys.argv[2:]: gen5.STAMP = True
    out = sys.argv[1] if len(sys.argv) > 1 else 'cdna_kernels/%s.s' % NAME
    gen5.main_fused(out)
```

```python
from asmlib import *
import gen10 as G

XF, BF, ACC, CST = 64, 80, 128, 112
XRB, TRB, MF = 116, 192, 160
XRS = 200
NFILL = 1
SS, GG, ONES, ST = 40, 44, 56, 60
VXD, VWO = 6, 8
def accn(p, tau, hi=0): return ACC + hi * 32 + (p * 2 + tau) * 4
def acc(p, tau, hi=0): return V(accn(p, tau, hi), 4)

def g1_phase(a, ST_, vm, hooks, end_label):
    MF16, srd, fl, SC = G.MF16, G.srd, G.fl, G.SC
    CSF = G.SM + 1024
    STFT = {'F': G.SM, 'S': G.FT}
    FILL = []
    a('s_lshr_b32 s43, s4, 1'); a('s_lshl_b32 s43, s43, 2'); a('s_and_b32 s52, s5, 3'); a('s_add_u32 s43, s43, s52')
    a('s_lshr_b32 s44, s5, 2'); a('s_lshl_b32 s44, s44, 1'); a('s_and_b32 s52, s4, 1'); a('s_add_u32 s44, s44, s52')
    a('s_and_b32 s50, s4, 2'); a('s_lshl_b32 s50, s50, 1')
    a('s_lshl_b32 s45, s43, 2'); a('s_add_u32 s45, s45, s6')
    a('v_lshrrev_b32 v10, 3, v2')
    a('v_lshlrev_b32 v10, 16, v10')
    a('v_and_b32 v11, 7, v2'); a('v_xor_b32 v11, v11, v4')
    a('s_and_b32 s52, s3, 1'); a('s_lshl_b32 s52, s52, 20')
    a('s_lshl_b32 s53, s43, 2'); a('s_lshr_b32 s54, s3, 1'); a('s_add_u32 s53, s53, s54'); a('s_lshl_b32 s53, s53, 10')
    a('s_add_u32 s52, s52, s53')
    a('v_add_u32 v10, s52, v10')
    a('v_lshl_add_u32 v%d, v11, 4, v10' % VXD)
    a('v_xor_b32 v11, 4, v11')
    a('v_lshl_add_u32 v%d, v11, 4, v10' % (VXD + 1))
    a('v_add_u32 v%d, 0x80000, v%d' % (VXD + 1, VXD + 1))
    a('s_lshl_b32 s46, s3, 11')
    def common_setup(ty):
      if ty == 'F':
        a('v_lshrrev_b32 v10, 2, v3')
        a('v_lshl_add_u32 v11, v4, 3, v10')
        a('v_lshlrev_b32 v11, 8, v11')
        a('v_and_b32 v12, 1, v4')
        a('v_lshl_add_u32 v10, v12, 2, v10')
        a('s_lshl_b32 s52, s7, 2')
        a('s_add_u32 s52, s52, s6')
        a('v_xor_b32 v10, s52, v10')
        a('v_lshl_add_u32 v11, v10, 5, v11')
        a('v_and_b32 v12, 3, v2')
        a('v_lshl_add_u32 v11, v12, 3, v11')
        a('v_add_u32 v11, 16384, v11')
        for p in range(4):
            a('v_xor_b32 v%d, %d, v11' % (TRB + p, p << 5))
            a('v_add_u32 v%d, 0x10000, v%d' % (TRB + 4 + p, TRB + p))
      else:
        a('v_lshrrev_b32 v10, 2, v3')
        a('v_lshl_add_u32 v10, v4, 2, v10')
        a('v_and_b32 v11, 6, v10')
        a('v_and_b32 v12, 3, v2')
        a('v_lshrrev_b32 v13, 1, v12')
        a('v_xor_b32 v11, v11, v13')
        a('s_lshl_b32 s52, s7, 2')
        a('v_xor_b32 v11, s52, v11')
        a('v_and_b32 v12, 1, v12')
        a('v_lshlrev_b32 v10, 7, v10')
        a('v_lshl_add_u32 v10, v12, 3, v10')
        a('v_lshl_add_u32 v10, v11, 4, v10')
        a('s_and_b32 s52, s4, 2'); a('s_lshl_b32 s52, s52, 13')
        a('v_add_u32 v%d, s52, v10' % TRB)
        a('v_xor_b32 v%d, 32, v%d' % (TRB + 1, TRB))
        a('v_xor_b32 v%d, 16384, v%d' % (TRB + 2, TRB))
        a('v_xor_b32 v%d, 16384, v%d' % (TRB + 3, TRB + 1))
      if True:
        a('v_lshrrev_b32 v10, 1, v3')
        a('v_xor_b32 v10, v10, v4')
        a('s_lshl_b32 s52, s6, 12'); a('s_lshl_b32 s53, s7, 11'); a('s_add_u32 s52, s52, s53')
        if ty == 'S': a('s_add_u32 s52, s52, 32768')
        a('v_lshlrev_b32 v11, 7, v3')
        a('v_lshl_add_u32 v11, v10, 4, v11')
        XB = XRB if ty == 'F' else XRS
        a('v_add_u32 v%d, s52, v11' % XB)
        a('v_xor_b32 v%d, 2048, v%d' % (XB + 1, XB))
        a('v_xor_b32 v%d, 64, v%d' % (XB + 2, XB))
        a('v_xor_b32 v%d, 64, v%d' % (XB + 3, XB + 1))
        for q in range(4): a('v_add_u32 v%d, 0x10000, v%d' % (XB + 4 + q, XB + q))
        a('v_cmp_eq_u32 s[56:57], 0, v3')
        a('v_and_b32 v10, 3, v3')
        a('v_cmp_eq_u32 s[58:59], 1, v10'); a('v_cmp_eq_u32 s[60:61], 2, v10'); a('v_cmp_eq_u32 s[62:63], 3, v10')
        a('v_lshrrev_b32 v10, 2, v3')
        a('v_cmp_eq_u32 s[64:65], v10, v4')
        for r in range(4): a('v_mov_b32 v%d, 0x3f803f80' % (ONES + r))
    def loads(ty, i):
        if ty == 'F':
            buf = (i & 3) * 32768
            a('s_lshl_b32 s52, s50, 7')
            a('s_mul_i32 s53, s50, %d' % (64 * 2752))
        else:
            buf = 32768 + i * 16384
            a('s_lshl_b32 s52, s50, 7')
        for z in range(2):
            a('s_add_u32 m0, s46, %d' % (buf + z * 1024))
            a('buffer_load_dwordx4 v%d, %s, s52 offen lds' % (VXD + z, srd(G.S_X)))
            vm.issue(('g1', i))
        if ty == 'F':
            for z in range(2):
                a('s_add_u32 m0, s46, %d' % (buf + 16384 + z * 1024))
                if z: a('s_add_u32 s53, s53, %d' % (4 * 2752))
                a('buffer_load_dwordx4 v%d, %s, s53 offen lds' % (VWO, srd(G.S_W1)))
                vm.issue(('g1', i))
        a('s_add_u32 s50, s50, 1'); a('s_and_b32 s50, s50, 7')
    def kloop(ty):
        def reads(kk):
            st, ks = kk >> 1, kk & 1
            L = []
            if ty == 'F':
                bank = 1 if (st & 3) >= 2 else 0
                xoff = (st & 1) * 32768; boff = xoff + ks * 8192
            else:
                bank = 1 if (st % 6) >= 4 else 0
                xoff = ((st % 6) & 3) * 16384; boff = (kk & 7) * 8192
            for tau in range(2):
                L.append('ds_read_b128 %s, v%d offset:%d' % (V(XF + (kk & 1) * 8 + 4 * tau, 4), XRB + bank * 4 + ks * 2 + tau, xoff))
            for p in range(4):
                for h2 in range(2):
                    L.append('ds_read_b64_tr_b16 %s, v%d offset:%d' % (V(BF + (kk & 1) * 16 + p * 4 + h2 * 2, 2), TRB + (bank * 4 if ty == 'F' else 0) + p, boff + h2 * 1024))
            return L
        vm.wait({('g1', 0)}); a('s_waitcnt lgkmcnt(0)'); a('s_barrier')
        ST_('first')
        for s in reads(0): a(s)
        for kk in range(16):
            a('s_waitcnt lgkmcnt(0)')
            fill = []
            if kk + 1 < 16:
                if (kk + 1) % 2 == 0:
                    s_ = (kk + 1) // 2
                    vm.wait({('g1', s_)}); a('s_barrier')
                    if ty == 'F' and s_ + 2 < 8: loads(ty, s_ + 2)
                    if ty == 'S' and s_ + 5 < 8: loads(ty, s_ + 5)
                    hooks(ty, 's%d' % s_)
                fill = reads(kk + 1)
            xt = [V(XF + (kk & 1) * 8 + 4 * tau, 4) for tau in range(2)]
            hi = 1 if (ty == 'S' and kk >= 8) else 0
            first = (kk == 0) or (ty == 'S' and kk == 8)
            mm = []
            for p in range(4):
                b_ = V(BF + (kk & 1) * 16 + p * 4, 4)
                for tau in range(2):
                    c = '0' if first else acc(p, tau, hi)
                    if ty == 'S': mm.append('%s %s, %s, %s, %s' % (MF16, acc(p, tau, hi), xt[tau], b_, c))
                    else: mm.append('%s %s, %s, %s, %s' % (MF16, acc(p, tau), b_, xt[tau], c))
            mm.append('%s %s, %s, %s, %s' % (MF16, V(SS, 4), V(ONES, 4), xt[0], '0' if kk == 0 else V(SS, 4)))
            mm.append('%s %s, %s, %s, %s' % (MF16, V(GG, 4), xt[0], xt[0], '0' if kk == 0 else V(GG, 4)))
            if ty == 'F':
                mm.append('%s %s, %s, %s, %s' % (MF16, V(CST, 4), V(BF + (kk & 1) * 16, 4), V(ONES, 4), '0' if kk == 0 else V(CST, 4)))
            for i, m in enumerate(mm):
                a(m)
                if i < len(fill): a(fill[i])
                if FILL and kk >= 1 and i < 8: a(FILL.pop(0))
                if i == 3: hooks(ty, 'k%d' % kk)
                if i == 8: hooks(ty, 'l%d' % kk)
        assert not FILL
    def kloop_s():
        RX, PX, TF = 64, 96, 112
        def reads(st):
            L = []
            bank = 1 if st >= 4 else 0
            for ks in range(2):
                for tau in range(2):
                    L.append('ds_read_b128 %s, v%d offset:%d' % (V(RX + (st & 1) * 16 + tau * 8 + ks * 4, 4), XRS + bank * 4 + ks * 2 + tau, (st & 3) * 16384))
            for t in range(2):
                for h2 in range(2):
                    L.append('ds_read_b64_tr_b16 %s, v%d offset:%d' % (V(TF + (st & 1) * 8 + t * 4 + h2 * 2, 2), TRB + bank * 2 + t, (st & 3) * 4096 + h2 * 2048))
            return L
        vm.wait({('g1', 0)}); a('s_waitcnt lgkmcnt(0)'); a('s_barrier')
        ST_('first')
        for s_ in reads(0): a(s_)
        for st in range(8):
            if st < 7:
                vm.wait({('g1', st + 1)}); a('s_barrier')
                if st + 4 < 8: loads('S', st + 4)
                hooks('S', 's%d' % (st + 1))
            a('s_waitcnt lgkmcnt(0)')
            fill = reads(st + 1) if st < 7 else []
            seq = []
            for tau in range(2):
                for eo in range(2):
                    r_ = RX + (st & 1) * 16 + tau * 8; o_ = PX + tau * 8 + eo * 4
                    pr = ['v_perm_b32 v%d, v%d, v%d, %s' % (o_ + q, r_ + 2 * q + 1, r_ + 2 * q, 's66' if eo == 0 else 's67') for q in range(4)]
                    mm = []
                    for t in range(2):
                        c = '0' if st == 0 else acc(2 * eo + t, tau)
                        mm.append('%s %s, %s, %s, %s' % (MF16, acc(2 * eo + t, tau), V(o_, 4), V(TF + (st & 1) * 8 + t * 4, 4), c))
                    if tau == 0:
                        f0 = st == 0 and eo == 0
                        mm.append('%s %s, %s, %s, %s' % (MF16, V(SS, 4), V(ONES, 4), V(o_, 4), '0' if f0 else V(SS, 4)))
                        mm.append('%s %s, %s, %s, %s' % (MF16, V(GG, 4), V(o_, 4), V(o_, 4), '0' if f0 else V(GG, 4)))
                    seq.append((pr, mm))
            for x in seq[0][0]: a(x)
            for gi, (pr, mm) in enumerate(seq):
                nxt = seq[gi + 1][0] if gi + 1 < 4 else []
                for i, m in enumerate(mm):
                    a(m)
                    for x in nxt[i * 4 // len(mm):(i + 1) * 4 // len(mm)]: a(x)
                    if fill: a(fill.pop(0))
                    for _ in range(2 if st < 2 else 1):
                        if FILL: a(FILL.pop(0))
            for x in fill: a(x)
        while FILL: a(FILL.pop(0))
    def epilogue(ty):
        STF = STFT[ty]
        a('v_cndmask_b32 v17, v%d, v%d, s[58:59]' % (GG, GG + 1))
        a('v_cndmask_b32 v17, v17, v%d, s[60:61]' % (GG + 2))
        a('v_cndmask_b32 v17, v17, v%d, s[62:63]' % (GG + 3))
        a('v_mul_f32 v16, %s, v%d' % (fl(1 / 512), SS))
        a('v_mul_f32 v17, %s, v17' % fl(1 / 512))
        a('v_fma_f32 v17, -v16, v16, v17')
        a('v_max_f32 v17, 0, v17')
        G.rbf16(a, 'v16', 'v18')
        G.rbf16(a, 'v17', 'v18')
        a('v_add_f32 v17, %s, v17' % fl(1e-5))
        G.rbf16(a, 'v17', 'v18')
        a('v_sqrt_f32 v17, v17')
        G.rbf16(a, 'v17', 'v18')
        a('v_rcp_f32 v17, v17')
        if ty == 'F': a('v_mul_f32 v17, %s, v17' % fl(-G.LOG2E))
        a('s_lshl_b32 s52, s6, 7'); a('s_lshl_b32 s53, s7, 6'); a('s_add_u32 s53, s53, s52'); a('s_add_u32 s53, s53, %d' % STF)
        a('v_lshl_add_u32 v12, v3, 2, s53')
        a('s_mov_b64 exec, s[64:65]')
        a('ds_write_b32 v12, v16')
        a('ds_write_b32 v12, v17 offset:512')
        if ty == 'F':
            a('s_lshl_b32 s53, s3, 6'); a('s_add_u32 s53, s53, %d' % CSF)
            a('s_mov_b64 exec, -1')
            a('v_lshl_add_u32 v13, v4, 4, s53')
            a('s_mov_b64 exec, s[56:57]')
            a('ds_write_b128 v13, %s' % V(CST, 4))
        a('s_mov_b64 exec, -1')
        a('s_waitcnt lgkmcnt(0)')
        a('s_barrier')
        hooks(ty, 'kend')
        if ty == 'F':
            a('v_xor_b32 v14, 64, v12')
            a('ds_read_b32 v%d, v12' % ST); a('ds_read_b32 v%d, v12 offset:512' % (ST + 1))
            a('ds_read_b32 v%d, v14' % (ST + 2)); a('ds_read_b32 v%d, v14 offset:512' % (ST + 3))
            for p in range(4):
                a('v_xor_b32 v15, %d, v13' % (p << 6))
                a('ds_read_b128 %s, v15' % V(BF + 4 * p, 4))
            a('s_lshl_b32 s52, s45, 1'); a('s_add_u32 s52, s52, s7'); a('s_xor_b32 s53, s52, 1')
            a('s_mul_i32 s52, s52, 43'); a('s_mul_i32 s53, s53, 43')
            a('s_lshl_b32 s54, s44, 2'); a('s_lshl_b32 s55, s7, 1'); a('s_add_u32 s54, s54, s55'); a('s_lshr_b32 s55, s6, 1')
            a('s_add_u32 s40, s54, s55'); a('s_xor_b32 s55, s55, 1'); a('s_add_u32 s41, s54, s55')
            for sp in range(2):
                for tau in range(2):
                    a('s_add_u32 s76, s%d, s%d' % (52 + tau, 40 + sp))
                    a('s_lshl_b32 s76, s76, 10')
                    a('s_cmp_ge_u32 s%d, 43' % (40 + sp))
                    a('s_cselect_b32 s%d, 0x7f000000, s76' % (G.S_TMP + 2 * sp + tau))
            a('s_and_b32 s40, s6, 1'); a('s_sub_u32 s40, 0, s40'); a('s_mov_b32 s41, s40')
            a('s_waitcnt lgkmcnt(0)')
            for sp in range(2):
                for tau in range(2):
                    o = XF + 8 * sp + 4 * tau
                    X = [accn(2 * sp + z, tau) + r for z in range(2) for r in range(4)]
                    C_ = [BF + 4 * (2 * sp + z) + r for z in range(2) for r in range(4)]
                    E = [16 + 8 * tau + i for i in range(8)]
                    mr = V(ST + 2 * tau, 2)
                    for i in range(0, 8, 2):
                        a('v_pk_fma_f32 %s, %s, %s, %s op_sel_hi:[0,1,1] neg_lo:[1,0,0] neg_hi:[1,0,0]' % (V(X[i], 2), mr, V(C_[i], 2), V(X[i], 2)))
                    for i in range(0, 8, 2):
                        a('v_pk_mul_f32 %s, %s, %s op_sel:[0,1] op_sel_hi:[1,1]' % (V(X[i], 2), V(X[i], 2), mr))
                    for i in range(8): a('v_exp_f32 v%d, v%d' % (E[i], X[i]))
                    hooks('F', 'e%d' % (sp * 4 + tau * 2))
                    for i in range(0, 8, 2): a('v_pk_add_f32 %s, %s, 1.0 op_sel_hi:[1,0]' % (V(E[i], 2), V(E[i], 2)))
                    for i in range(8): a('v_rcp_f32 v%d, v%d' % (E[i], E[i]))
                    hooks('F', 'e%d' % (sp * 4 + tau * 2 + 1))
                    for i in range(0, 8, 2): a('v_pk_mul_f32 %s, %s, %s' % (V(X[i], 2), V(X[i], 2), V(E[i], 2)))
                    for i in range(0, 8, 2): a('v_cvt_pk_bf16_f32 v%d, v%d, v%d' % (o + (i >> 1), X[i], X[i] + 1))
                    a('s_mov_b64 exec, s[40:41]')
                    a('v_swap_b32 v%d, v%d' % (o, o + 2)); a('v_swap_b32 v%d, v%d' % (o + 1, o + 3))
                    a('s_mov_b64 exec, -1')
                    a('buffer_store_dwordx4 %s, v%d, %s, s%d offen%s' % (V(o, 4), G.VL16, srd(G.S_WS), G.S_TMP + 2 * sp + tau, SC()))
            a('s_branch %s' % end_label)
        else:
            a('s_lshl_b32 s52, s6, 7'); a('s_lshl_b32 s53, s7, 6'); a('s_add_u32 s53, s53, s52'); a('s_add_u32 s53, s53, %d' % STF)
            a('v_lshl_add_u32 v13, v4, 4, s53')
            a('v_xor_b32 v14, 64, v13')
            a('ds_read_b128 v[16:19], v13'); a('ds_read_b128 v[24:27], v13 offset:512')
            a('ds_read_b128 v[20:23], v14'); a('ds_read_b128 v[28:31], v14 offset:512')
            a('s_add_u32 s52, s44, s7'); a('s_cmp_eq_u32 s52, 11')
            a('s_cselect_b32 s52, %s, 0' % fl(256.0))
            a('v_mov_b32 v32, 0'); a('v_mov_b32 v33, s52')
            a('v_cndmask_b32 v32, v32, v33, s[56:57]')
            a('s_lshl_b32 s52, s3, 12')
            a('v_lshlrev_b32 v12, 6, v3'); a('v_lshl_add_u32 v12, v4, 4, v12'); a('v_add_u32 v12, s52, v12')
            a('s_waitcnt lgkmcnt(0)')
            for tau in range(2):
                for r in (0, 2):
                    Er, Ei, Or, Oi = [accn(p, tau) + r for p in range(4)]
                    t0 = 36 + 4 * (r >> 1); R_ = V(24 + 4 * tau + r, 2)
                    for y_ in (Or, Er):
                        a('v_pk_fma_f32 %s, %s, v[32:33], %s op_sel_hi:[1,0,1] neg_lo:[1,0,0] neg_hi:[1,0,0]' % (V(y_, 2), V(16 + 4 * tau + r, 2), V(y_, 2)))
                    a('v_pk_mul_f32 %s, %s, v[34:35] op_sel_hi:[1,0]' % (V(t0, 2), V(Or, 2)))
                    a('v_pk_mul_f32 %s, %s, v[34:35] op_sel_hi:[1,0]' % (V(t0 + 2, 2), V(Oi, 2)))
                    a('v_pk_fma_f32 %s, %s, v[34:35], %s op_sel:[0,1,0] op_sel_hi:[1,1,1]' % (V(t0, 2), V(Oi, 2), V(t0, 2)))
                    a('v_pk_fma_f32 %s, %s, v[34:35], %s op_sel:[0,1,0] op_sel_hi:[1,1,1] neg_lo:[1,0,0] neg_hi:[1,0,0]' % (V(t0 + 2, 2), V(Or, 2), V(t0 + 2, 2)))
                    a('v_pk_mul_f32 %s, %s, %s' % (V(t0, 2), V(t0, 2), R_))
                    a('v_pk_mul_f32 %s, %s, %s' % (V(t0 + 2, 2), V(t0 + 2, 2), R_))
                    a('v_pk_fma_f32 %s, %s, %s, %s' % (V(Or, 2), V(Er, 2), R_, V(t0, 2)))
                    a('v_pk_fma_f32 %s, %s, %s, %s' % (V(Oi, 2), V(Ei, 2), R_, V(t0 + 2, 2)))
                    a('v_pk_fma_f32 %s, %s, %s, %s neg_lo:[0,0,1] neg_hi:[0,0,1]' % (V(Er, 2), V(Er, 2), R_, V(t0, 2)))
                    a('v_pk_fma_f32 %s, %s, %s, %s neg_lo:[1,0,0] neg_hi:[1,0,0]' % (V(Ei, 2), V(Ei, 2), R_, V(t0 + 2, 2)))
            for sp in range(2):
                re_, im_ = (2, 3) if sp == 0 else (0, 1)
                hooks('S', 'e%d' % sp)
                ZR, ZI, NZ = 40 + 12 * sp, 44 + 12 * sp, 48 + 12 * sp
                for tau in range(2):
                    for p in range(2):
                        x_ = accn(re_, tau) + 2 * p; y_ = accn(im_, tau) + 2 * p
                        a('v_cvt_pk_bf16_f32 v%d, v%d, v%d' % (ZR + 2 * tau + p, x_, x_ + 1))
                        a('v_cvt_pk_bf16_f32 v%d, v%d, v%d' % (ZI + 2 * tau + p, y_, y_ + 1))
                        a('v_cvt_pk_bf16_f32 v%d, -v%d, -v%d' % (NZ + 2 * tau + p, x_, x_ + 1))
                O = 96 + 16 * sp
                for i in range(2):
                    a('%s %s, %s, %s, 0' % (MF16, V(O + 8 * i, 4), V(ZR, 4), V(MF + 4 * i, 4)))
                    a('%s %s, %s, %s, 0' % (MF16, V(O + 4 + 8 * i, 4), V(ZI, 4), V(MF + 4 * i, 4)))
                for i in range(2):
                    a('%s %s, %s, %s, %s' % (MF16, V(O + 8 * i, 4), V(ZI, 4), V(MF + 8 + 4 * i, 4), V(O + 8 * i, 4)))
                    a('%s %s, %s, %s, %s' % (MF16, V(O + 4 + 8 * i, 4), V(NZ, 4), V(MF + 8 + 4 * i, 4), V(O + 4 + 8 * i, 4)))
            a('v_lshrrev_b32 v10, 2, v2'); a('v_and_b32 v10, 3, v10')
            a('v_lshlrev_b32 v10, 12, v10')
            a('v_lshl_add_u32 v10, v4, 6, v10')
            a('v_and_b32 v11, 3, v2')
            a('v_lshl_add_u32 v10, v11, 4, v10')
            a('s_lshl_b32 s52, s7, 14'); a('s_lshl_b32 s53, s6, 10'); a('s_add_u32 s52, s52, s53')
            a('v_add_u32 v10, s52, v10')
            a('v_lshlrev_b32 v11, 12, v4')
            a('v_lshl_add_u32 v11, v3, 4, v11')
            a('s_sub_u32 s55, s44, 11'); a('s_lshl_b32 s55, s55, 1'); a('s_add_u32 s55, s55, s7')
            a('s_and_b32 s53, s55, 8'); a('s_add_u32 s55, s55, s53'); a('s_lshl_b32 s52, s6, 2'); a('s_and_b32 s52, s52, 8'); a('s_add_u32 s55, s55, s52')
            a('s_lshl_b32 s52, s55, 17'); a('s_and_b32 s53, s6, 1'); a('s_lshl_b32 s53, s53, 16'); a('s_add_u32 s52, s52, s53')
            a('s_lshl_b32 s53, s43, 8'); a('s_add_u32 s52, s52, s53'); a('s_add_u32 s52, s52, %d' % G.AB_OFF)
            a('s_cmp_gt_u32 s55, 16'); a('s_cselect_b32 s52, 0x7f000000, s52')
            for sp in range(2):
                O = 96 + 16 * sp
                for i in range(2):
                    o = XF + 8 * sp + 4 * i
                    for p in range(4):
                        a('v_cvt_pk_bf16_f32 v%d, v%d, v%d' % (o + p, O + 8 * i + 2 * p, O + 8 * i + 2 * p + 1))
                    a('ds_write_b128 v12, %s offset:%d' % (V(o, 4), sp * 2048 + i * 1024))
            a('s_waitcnt lgkmcnt(0)')
            ST_('tw')
            a('s_barrier')
            ST_('tb')
            for q in range(4): a('ds_read_b128 %s, v10 offset:%d' % (V(BF + 4 * q, 4), q * 256))
            for q in range(4):
                a('s_waitcnt lgkmcnt(%d)' % (3 - q))
                a('buffer_store_dwordx4 %s, v11, %s, s52 offen%s' % (V(BF + 4 * q, 4), srd(G.S_WS), SC()))
                if q < 3: a('s_add_u32 s52, s52, 16384')
    a('s_cmp_ge_u32 s44, 11')
    a('s_cbranch_scc1 L_g1_S')
    q0 = list(vm.q)
    a('s_lshl_b32 s52, s3, 3')
    a('v_add_u32 v11, s52, v4')
    a('s_mov_b32 s52, 2752')
    a('v_mul_lo_u32 v11, v11, s52')
    a('s_lshl_b32 s52, s44, 8')
    a('v_add_u32 v11, s52, v11')
    a('s_and_b32 s52, s3, 1'); a('s_lshl_b32 s52, s52, 3')
    a('v_lshlrev_b32 v10, 1, v4')
    a('v_xor_b32 v10, v10, v3')
    a('v_xor_b32 v10, s52, v10')
    a('v_lshl_add_u32 v%d, v10, 4, v11' % VWO)
    loads('F', 0)
    common_setup('F')
    loads('F', 1)
    hooks('F', 'pf')
    hooks('F', 'start')
    loads('F', 2)
    ST_('issued')
    kloop('F'); ST_('kloop')
    epilogue('F')
    a.label('L_g1_S')
    vm.q = list(q0)
    loads('S', 0); loads('S', 1); loads('S', 2)
    ST_('issued')
    common_setup('S')
    a('s_mov_b32 s66, 0x05040100'); a('s_mov_b32 s67, 0x07060302')
    a('v_and_b32 v9, 255, v0')
    a('s_sub_u32 s55, s44, 11'); a('s_lshl_b32 s55, s55, 5'); a('s_lshl_b32 s52, s7, 4'); a('s_add_u32 s55, s55, s52')
    a('v_cvt_f32_u32 v10, v9')
    a('v_mul_f32 v10, %s, v10' % fl(1 / 256))
    a('v_cos_f32 v12, v10'); a('v_sin_f32 v13, v10')
    a('v_and_b32 v11, 6, v9')
    a('s_lshl_b32 s52, s7, 2')
    a('v_xor_b32 v11, s52, v11')
    a('v_lshlrev_b32 v11, 4, v11'); a('v_lshl_add_u32 v11, v9, 7, v11')
    a('v_mul_u32_u24 v14, s55, v9'); a('v_and_b32 v14, 255, v14'); a('v_cvt_f32_u32 v14, v14'); a('v_mul_f32 v14, %s, v14' % fl(1 / 256))
    P = [16, 18]
    O = 64
    a('v_cos_f32 v16, v14'); a('v_sin_f32 v17, v14')
    for i in range(16):
        cur, nxt = P[i & 1], P[(i + 1) & 1]
        if i < 15:
            a('v_pk_mul_f32 v[20:21], v[%d:%d], v[12:13] op_sel_hi:[1,0]' % (cur, cur + 1))
            if i & 1:
                a('v_cvt_pk_bf16_f32 v%d, v%d, v%d' % (O + (i >> 1), nxt, cur))
                a('v_cvt_pk_bf16_f32 v%d, -v%d, -v%d' % (O + 8 + (i >> 1), nxt + 1, cur + 1))
            a('v_pk_fma_f32 v[%d:%d], v[%d:%d], v[12:13], v[20:21] op_sel:[1,1,0] op_sel_hi:[0,1,1] neg_lo:[1,0,0]' % (nxt, nxt + 1, cur, cur + 1))
        else:
            a('v_cvt_pk_bf16_f32 v%d, v%d, v%d' % (O + 7, nxt, cur))
            a('v_cvt_pk_bf16_f32 v%d, -v%d, -v%d' % (O + 15, nxt + 1, cur + 1))
    for u in range(4):
        if u: a('v_xor_b32 v14, %d, v11' % (u << 4))
        a('ds_write_b128 %s, %s' % ('v14' if u else 'v11', V(O + 4 * u, 4)))
    a('v_add_u32 v10, s55, v3'); a('v_cvt_f32_u32 v10, v10'); a('v_mul_f32 v10, %s, v10' % fl(1 / 512))
    a('v_cos_f32 v34, v10'); a('v_sin_f32 v35, v10')
    a('s_lshl_b32 s76, s7, 10'); a('s_add_u32 s76, s76, s45')
    a('s_cmp_eq_u32 s7, 0'); a('s_cselect_b32 s77, 0.5, -0.5')
    for i in range(2):
        F_ = FILL.append
        F_('v_add_u32 v10, %d, v3' % (16 * i))
        F_('v_lshl_add_u32 v11, v4, 8, s76')
        F_('v_mul_u32_u24 v11, v10, v11')
        F_('v_and_b32 v11, 2047, v11')
        F_('v_cvt_f32_u32 v11, v11'); F_('v_cvt_f32_u32 v10, v10')
        F_('v_mul_f32 v11, %s, v11' % fl(1 / 2048))
        F_('v_fma_f32 v13, v10, s77, v11')
        F_('v_mul_f32 v10, %s, v10' % fl(1 / 32))
        for j in range(8):
            b_ = 'v11' if j < 4 else 'v13'
            jj = j & 3
            if jj: F_('v_fmamk_f32 v12, v10, %s, %s' % (fl(float(jj)), b_))
            if jj or j >= 4: F_('v_fract_f32 v12, %s' % ('v12' if jj else b_))
            src = 'v12' if (jj or j >= 4) else 'v11'
            F_('v_cos_f32 v%d, %s' % (16 + j, src)); F_('v_sin_f32 v%d, %s' % (24 + j, src))
        for p in range(4):
            F_('v_cvt_pk_bf16_f32 v%d, v%d, v%d' % (MF + 4 * i + p, 16 + 2 * p, 17 + 2 * p))
            F_('v_cvt_pk_bf16_f32 v%d, v%d, v%d' % (MF + 8 + 4 * i + p, 24 + 2 * p, 25 + 2 * p))
    while FILL: a(FILL.pop(0))
    hooks('S', 'start')
    ST_('gen')
    loads('S', 3)
    kloop_s(); ST_('kloop')
    epilogue('S')
```

```python
import sys, struct, math
sys.path.insert(0, 'gen')
from asmlib import *

NAME = 'parallel_sum__spectral_gfnet__dense_activation_silu__prompt'
HF_OFF = 0
AB_OFF = 6 << 20
DB_OFF = 9 << 20
CNT_OFF = 12 << 20
STAMP_OFF = 13 << 20
WS_BYTES = 14 << 20
MODE = 'multi'
STAMP = False
LOG2E = 1.4426950408889634

def f2u(x): return struct.unpack('<I', struct.pack('<f', x))[0]
def hx(x): return '0x%08x' % (x & 0xffffffff)
def fl(x): return hx(f2u(x))
S_X, S_W1, S_W2, S_WS, S_OUT, S_WR, S_WI, S_DBG = 8, 12, 16, 20, 24, 28, 32, 36
def srd(n): return 's[%d:%d]' % (n, n + 3)
def SC(): return ' sc1' if MODE == 'fused' else ''
MF16 = 'v_mfma_f32_16x16x32_bf16'

class VM:
    def __init__(self, a): self.a = a; self.q = []
    def issue(self, tag): self.q.append(tag)
    def wait(self, tags):
        idx = [i for i, t in enumerate(self.q) if t in tags]
        if not idx: return
        n = len(self.q) - 1 - max(idx)
        assert n <= 63
        self.a('s_waitcnt vmcnt(%d)' % n)
        self.q = self.q[max(idx) + 1:]
    def drain(self):
        self.a('s_waitcnt vmcnt(0)'); self.q = []

class Stamps:
    def __init__(self, a, kid): self.a = a; self.kid = kid; self.names = []
    def __call__(self, name):
        if not STAMP or name in SKIPST: return
        a = self.a
        if name not in self.names: self.names.append(name)
        k = self.names.index(name)
        assert k < 18, self.names
        a('s_memtime s[78:79]'); a('s_waitcnt lgkmcnt(0)'); a('s_mov_b32 s%d, s78' % (80 + k))
    def start(self):
        if not STAMP: return
        a = self.a
        for k in range(20): a('s_mov_b32 s%d, 0' % (80 + k))
        a('s_memrealtime s[78:79]'); a('s_waitcnt lgkmcnt(0)'); a('s_mov_b32 s98, s78')
        self('start')
    def end(self):
        if not STAMP: return
        a = self.a
        self('end')
        a('s_memrealtime s[78:79]'); a('s_waitcnt lgkmcnt(0)'); a('s_mov_b32 s99, s78')
        a('s_lshl_b32 s78, s2, 3'); a('s_add_u32 s78, s78, s3'); a('s_lshl_b32 s78, s78, 7'); a('s_add_u32 s78, s78, %d' % (STAMP_OFF + self.kid * 262144))
        for k in range(20): a('v_writelane_b32 v255, s%d, %d' % (80 + k, k))
        a('v_lshlrev_b32 v254, 2, v2')
        a('s_mov_b64 exec, 0xfffff')
        a('buffer_store_dword v255, v254, %s, s78 offen' % srd(S_WS))
        a('s_mov_b64 exec, -1')

VL16 = 5
def prologue(a, exit_label):
    a('s_cmp_ge_u32 s2, 256')
    a('s_cbranch_scc1 %s' % exit_label)
    a('s_load_dwordx4 s[40:43], s[0:1], 0')
    a('s_load_dwordx2 s[44:45], s[0:1], 16')
    a('s_load_dwordx8 s[48:55], s[0:1], 32')
    a('s_load_dwordx2 s[56:57], s[0:1], 64')
    a('v_lshrrev_b32 v1, 6, v0')
    a('v_and_b32 v2, 63, v0')
    a('v_readfirstlane_b32 s3, v1')
    a('v_and_b32 v3, 15, v2')
    a('v_lshrrev_b32 v4, 4, v2')
    a('v_lshlrev_b32 v%d, 4, v2' % VL16)
    a('s_and_b32 s4, s2, 7')
    a('s_lshr_b32 s5, s2, 3')
    a('s_and_b32 s6, s3, 3')
    a('s_lshr_b32 s7, s3, 2')
    a('s_waitcnt lgkmcnt(0)')
    for home, lo, nbytes in ((S_X, 40, 2 << 20), (S_W1, 48, 512 * 2752), (S_WS, 56, WS_BYTES), (S_W2, 50, 1376 * 1024), (S_WR, 42, 2048 * 514), (S_WI, 44, 2048 * 514),
                             (S_OUT, 52, 2 << 20), (S_DBG, 54, 256)):
        a('s_mov_b32 s%d, s%d' % (home, lo))
        a('s_and_b32 s%d, s%d, 0xffff' % (home + 1, lo + 1))
        a('s_mov_b32 s%d, %s' % (home + 2, hx(nbytes)))
        a('s_mov_b32 s%d, 0x00020000' % (home + 3))

def rbf16(a, v, tmp):
    a('v_cvt_pk_bf16_f32 %s, %s, %s' % (tmp, v, v))
    a('v_lshlrev_b32 %s, 16, %s' % (v, tmp))

SLOT = 16384
SM = 9 * SLOT
FT = 4 * SLOT
LFLAG = SM + 2048

FTR = 176
def gen_ftab(a):
    a('s_and_b32 s52, s3, 1'); a('s_lshl_b32 s52, s52, 4')
    a('v_add_u32 v10, s52, v3')
    a('s_lshr_b32 s52, s3, 1')
    a('s_cmp_ge_u32 s52, 2'); a('s_cselect_b32 s53, 0, 1'); a('s_cselect_b32 s54, 3, 2'); a('s_cselect_b32 s55, 1, 0')
    a('s_cmp_eq_u32 s52, 1'); a('s_cselect_b32 s52, 1, 0')
    a('v_lshlrev_b32 v10, s53, v10'); a('v_add_u32 v10, s52, v10')
    a('v_lshlrev_b32 v11, s54, v4'); a('v_add_u32 v11, s55, v11')
    a('v_mul_u32_u24 v11, v10, v11')
    a('v_and_b32 v11, 63, v11')
    a('v_lshlrev_b32 v10, s55, v10')
    a('v_cvt_f32_u32 v11, v11'); a('v_cvt_f32_u32 v10, v10')
    a('v_mul_f32 v11, %s, v11' % fl(1 / 64)); a('v_mul_f32 v10, %s, v10' % fl(1 / 64))
    for j in range(8):
        jj = (j & 3) + 16 * (j >> 2)
        if jj:
            a('v_fmamk_f32 v12, v10, %s, v11' % fl(float(jj)))
            a('v_fract_f32 v12, v12')
        src = 'v12' if jj else 'v11'
        a('v_cos_f32 v%d, %s' % (16 + j, src)); a('v_sin_f32 v%d, %s' % (24 + j, src))
    for p in range(4):
        a('v_cvt_pk_bf16_f32 v%d, v%d, v%d' % (FTR + p, 16 + 2 * p, 17 + 2 * p))
        a('v_cvt_pk_bf16_f32 v%d, v%d, v%d' % (FTR + 4 + p, 24 + 2 * p, 25 + 2 * p))
def put_ftab(a):
    a('v_lshlrev_b32 v10, 4, v0')
    a('v_add_u32 v10, %d, v10' % FT)
    a('ds_write_b128 v10, %s' % V(FTR, 4))
    a('ds_write_b128 v10, %s offset:8192' % V(FTR + 4, 4))

S_TMP = 64
def p2_setup(a):
    a('s_mul_i32 s101, s43, 5'); a('s_add_u32 s101, s101, s44'); a('s_sub_u32 s101, s101, 11')
    a('s_mul_i32 s52, s101, 7'); a('s_mul_i32 s53, s101, 6'); a('s_add_u32 s53, s53, 64')
    a('s_cmp_lt_u32 s101, 64'); a('s_cselect_b32 s54, s52, s53'); a('s_cselect_b32 s42, 7, 6'); a('s_add_u32 s52, s54, s3')
    a('s_mul_i32 s100, s52, 3856'); a('s_lshr_b32 s100, s100, 16')
    a('s_mul_i32 s53, s100, 17'); a('s_sub_u32 s40, s52, s53')
    a('s_sub_u32 s47, 24, s40'); a('s_cmp_lt_u32 s40, 9'); a('s_cselect_b32 s47, s40, s47'); a('s_cselect_b32 s51, 2, -2')
    a('v_mul_lo_u32 v%d, s51, v3' % (VWA + 1))
    a('s_cmp_eq_u32 s40, 8'); a('s_cselect_b32 s47, 16, s47')
    a('s_cmp_lt_u32 s3, s42'); a('s_cselect_b32 s48, 1, 0')
    a('s_lshl_b32 s51, s47, 5'); a('s_add_u32 s51, s51, s100')
    a('s_lshl_b32 s49, s3, 12'); a('s_add_u32 s52, s49, %d' % (SM - 3 * 4096))
    a('s_cmp_lt_u32 s3, 4'); a('s_cselect_b32 s49, s49, s52')
    a('s_mul_i32 s55, s54, 3856'); a('s_lshr_b32 s55, s55, 16')
    a('s_mul_i32 s53, s55, 17'); a('s_sub_u32 s54, s54, s53')
    a('s_sub_u32 s53, 17, s54'); a('s_min_u32 s53, s53, s42'); a('s_lshl_b32 s41, s53, 1'); a('s_add_u32 s41, s41, 1')
    a('s_cmp_ge_u32 s54, 9'); a('s_cselect_b32 s52, 30, 0'); a('s_lshl_b32 s54, s54, 5'); a('s_sub_u32 s54, s54, s52')
    a('s_lshl_b32 s40, s40, 5')
    a('s_lshl_b32 s52, s55, 1'); a('s_add_u32 s52, s52, s54'); a('s_and_b32 s52, s52, 3'); a('s_sub_u32 s52, s52, s54')
    a('s_lshl_b32 s53, s41, 3'); a('s_bitcmp1_b32 s100, 0'); a('s_addc_u32 s53, s53, 0'); a('s_lshl_b32 s53, s53, 1')
    a('s_cmp_eq_u32 s100, s55'); a('s_cselect_b32 s52, s52, s53'); a('s_add_u32 s40, s40, s52')
    a('s_lshl_b32 s52, s6, 1')
    a('v_xor_b32 v10, s52, v3')
    a('s_lshl_b32 s52, s6, 3')
    a('v_add_u32 v11, s52, v4')
    a('v_lshl_add_u32 v11, v11, 5, s55')
    a('s_mov_b32 s52, 514')
    a('v_mul_lo_u32 v11, v11, s52')
    a('v_add_u32 v12, 514, v11')
    a('v_add_u32 v11, s54, v11')
    a('v_and_b32 v11, -4, v11'); a('v_and_b32 v12, -4, v12')
    a('s_lshl_b32 s52, s41, 4')
    a('v_subrev_u32 v12, s52, v12')
    a('v_cmp_gt_u32 vcc, s41, v10')
    a('v_cndmask_b32 v11, v12, v11, vcc')
    a('v_lshl_add_u32 v%d, v10, 4, v11' % VWA)
    a('s_cmp_ge_u32 s3, 4'); a('s_cselect_b32 s%d, s%d, s%d' % (S_WR, S_WI, S_WR)); a('s_cselect_b32 s%d, s%d, s%d' % (S_WR + 1, S_WI + 1, S_WR + 1))

VWA = 196
WST = 2 * SLOT
def p2_wloads(a, vm, zs):
    a('s_lshl_b32 s52, s7, 14'); a('s_lshl_b32 s53, s6, 11'); a('s_add_u32 s52, s52, s53')
    for z in zs:
        rr = 32 * (z >> 1) + 4 * (z & 1)
        a('s_add_u32 m0, s52, %d' % (WST + rr * 256))
        a('s_mov_b32 s53, %d' % (rr * 32 * 514))
        a('buffer_load_dwordx4 v%d, %s, s53 offen lds' % (VWA, srd(S_WR))); vm.issue('w')

def p2_wzero(a):
    for e in range(32): a('v_mov_b32 v%d, 0' % (160 + e))
def p2_wtrans(a):
    a('v_add_u32 v10, s40, v%d' % (VWA + 1))
    a('v_lshrrev_b32 v11, 4, v10')
    a('v_lshlrev_b32 v12, 1, v4')
    a('v_xor_b32 v11, v11, v12')
    a('v_and_b32 v10, 15, v10')
    a('v_lshl_add_u32 v10, v11, 4, v10')
    a('v_lshl_add_u32 v10, v4, 11, v10')
    a('v_add_u32 v10, %d, v10' % WST)
    for e in range(16):
        i, r = e >> 2, e & 3
        for ar in range(2):
            a('ds_read_u16_d16_hi v%d, v10 offset:%d' % (160 + 2 * e + ar, ar * 16384 + (32 * (i & 1) + 2 * r + (i >> 1)) * 256))
    a('s_waitcnt lgkmcnt(0)')
    a('s_cmp_lg_u32 s47, 16')
    a('s_cbranch_scc1 L_wnomask')
    a('v_cmp_eq_u32 vcc, 0, v3')
    for e in range(32): a('v_cndmask_b32 v%d, 0, v%d, vcc' % (160 + e, 160 + e))
    a.label('L_wnomask')

def p2_aload(a):
    a('s_lshl_b32 s52, s51, 12'); a('s_add_u32 s52, s52, %d' % AB_OFF)
    a('s_mov_b32 m0, s49')
    for z in range(4):
        a('buffer_load_dwordx4 v%d, %s, s52 offen offset:%d%s lds' % (VL16, srd(S_WS), z * 1024, SC()))

def p2_fread(a):
    CF, SF = 64, 88
    a('v_add_u32 v12, %d, v%d' % (FT, VL16))
    for fi in range(6): a('ds_read_b128 %s, v12 offset:%d' % (V(CF + 4 * fi, 4), fi * 1024))
    for fi in range(6): a('ds_read_b128 %s, v12 offset:%d' % (V(SF + 4 * fi, 4), 8192 + fi * 1024))

def p2_pre(a):
    a('v_lshrrev_b32 v13, 2, v3')
    a('v_lshl_add_u32 v13, v4, 2, v13')
    a('v_lshlrev_b32 v13, 6, v13')
    a('v_and_b32 v11, 3, v2')
    a('v_lshl_add_u32 v13, v11, 4, v13')
    a('v_add_u32 v13, s49, v13')
    a('v_lshlrev_b32 v14, 6, v3'); a('v_lshl_add_u32 v14, v4, 4, v14'); a('v_add_u32 v14, s49, v14')
    a('s_and_b32 s52, s100, 8'); a('v_xor_b32 v14, s52, v14'); a('v_xor_b32 v9, 8, v14')
    a('v_add_u32 v12, s49, v%d' % VL16)
    a('s_lshl_b32 s52, s47, 12'); a('s_lshl_b32 s53, s100, 6'); a('s_add_u32 s52, s52, s53'); a('s_add_u32 s41, s52, %d' % DB_OFF)
    a('s_mov_b32 s53, %d' % (17 * 4096))
    a('v_lshrrev_b32 v15, 3, v2')
    a('v_mul_lo_u32 v15, v15, s53')
    a('v_and_b32 v11, 4, v2')
    a('v_lshl_add_u32 v15, v11, 9, v15')
    a('v_and_b32 v11, 3, v2')
    a('v_lshl_add_u32 v15, v11, 4, v15')

def p2_compute(a, nvm=0, st=None):
    CF, SF = 64, 88
    a('s_waitcnt vmcnt(%d) lgkmcnt(0)' % nvm)
    st('ald')
    AR, AI, NAR, NAI = 16, 24, 32, 40
    for ks in range(2):
        for h2 in range(2):
            a('ds_read_b64_tr_b16 %s, v13 offset:%d' % (V(AR + 4 * ks + 2 * h2, 2), ks * 2048 + h2 * 1024))
            a('ds_read_b64_tr_b16 %s, v13 offset:%d' % (V(AI + 4 * ks + 2 * h2, 2), ks * 2048 + h2 * 1024 + 8))
    XR, XI = 128, 144
    def C(job, t): return V(CF + (job * 2 + t) * 4, 4)
    def S(job, t): return V(SF + (job * 2 + t) * 4, 4)
    def mix(M, P, per=None):
        n = len(M); k = 0
        for i, m in enumerate(M):
            a(m)
            while k < len(P) * (i + 1) // n: a(P[k]); k += 1
    def fwd(i, ks):
        job, t = i >> 1, i & 1
        neg = job == 1 and ks == 1
        ar, ai, nar = (V(NAR + 4, 4), V(NAI, 4), V(AR + 4, 4)) if neg else (V(AR + 4 * ks, 4), V(AI + 4 * ks, 4), V(NAR + 4 * ks, 4))
        return ['%s %s, %s, %s, %s' % (MF16, V(XR + 4 * i, 4), C(job, t), ar, '0' if ks == 0 else V(XR + 4 * i, 4)),
                '%s %s, %s, %s, %s' % (MF16, V(XI + 4 * i, 4), C(job, t), ai, '0' if ks == 0 else V(XI + 4 * i, 4)),
                '%s %s, %s, %s, %s' % (MF16, V(XR + 4 * i, 4), S(job, t), ai, V(XR + 4 * i, 4)),
                '%s %s, %s, %s, %s' % (MF16, V(XI + 4 * i, 4), S(job, t), nar, V(XI + 4 * i, 4))]
    def il(x, y): return [z for p_ in zip(x, y) for z in p_]
    VR, VI, NVI = 44, 52, 112
    def wmul(i):
        L = []
        for r in range(4):
            e = 4 * i + r
            tr, ti = 192 + (e & 3), 196 + (e & 3)
            L.append('v_mul_f32 v%d, v%d, v%d' % (tr, XR + e, 160 + 2 * e))
            L.append('v_mul_f32 v%d, v%d, v%d' % (ti, XR + e, 161 + 2 * e))
        for r in range(4):
            e = 4 * i + r
            tr, ti = 192 + (e & 3), 196 + (e & 3)
            L.append('v_fma_f32 v%d, -v%d, v%d, v%d' % (tr, XI + e, 161 + 2 * e, tr))
            L.append('v_fmac_f32 v%d, v%d, v%d' % (ti, XI + e, 160 + 2 * e))
        for h in range(2):
            p = 2 * i + h
            L.append('v_cvt_pk_bf16_f32 v%d, v%d, v%d' % (VR + p, 192 + 2 * h, 193 + 2 * h))
            L.append('v_cvt_pk_bf16_f32 v%d, v%d, v%d' % (VI + p, 196 + 2 * h, 197 + 2 * h))
            L.append('v_cvt_pk_bf16_f32 v%d, -v%d, -v%d' % (NVI + p, 196 + 2 * h, 197 + 2 * h))
        return L
    a('s_waitcnt lgkmcnt(4)')
    for p in range(4): a('v_xor_b32 v%d, 0x80008000, v%d' % (NAR + p, AR + p))
    for m in il(fwd(0, 0), fwd(1, 0))[:4]: a(m)
    a('s_waitcnt lgkmcnt(0)')
    mix(il(fwd(0, 0), fwd(1, 0))[4:], ['v_xor_b32 v%d, 0x80008000, v%d' % (NAR + 4 + p, AR + 4 + p) for p in range(4)] + ['v_xor_b32 v%d, 0x80008000, v%d' % (NAI + p, AI + 4 + p) for p in range(4)])
    for m in il(fwd(0, 1), fwd(1, 1)): a(m)
    for m in il(fwd(2, 0), fwd(3, 0))[:4]: a(m)
    mix(il(fwd(2, 0), fwd(3, 0))[4:] + il(fwd(2, 1), fwd(3, 1)), wmul(0) + wmul(1))
    def inv(par, R, I):
        job = 0 if par == 0 else 2
        L = []
        for t in range(2):
            L.append('%s %s, %s, %s, 0' % (MF16, V(R + 4 * t, 4), V(VR + 4 * par, 4), C(job, t)))
            L.append('%s %s, %s, %s, 0' % (MF16, V(I + 4 * t, 4), V(VI + 4 * par, 4), C(job, t)))
        for t in range(2):
            L.append('%s %s, %s, %s, %s' % (MF16, V(R + 4 * t, 4), V(NVI + 4 * par, 4), S(job, t), V(R + 4 * t, 4)))
            L.append('%s %s, %s, %s, %s' % (MF16, V(I + 4 * t, 4), V(VR + 4 * par, 4), S(job, t), V(I + 4 * t, 4)))
        return L
    mix(inv(0, 16, 24), wmul(2) + wmul(3))
    for m in inv(1, 128, 144): a(m)
    for t in range(2):
        for (E_, O_, L_) in ((16 + 4 * t, 128 + 4 * t, 32), (24 + 4 * t, 144 + 4 * t, 36)):
            for h in range(4):
                a('v_add_f32 v%d, v%d, v%d' % (L_ + h, E_ + h, O_ + h))
                a('v_sub_f32 v%d, v%d, v%d' % (O_ + h, E_ + h, O_ + h))
        for hi in range(2):
            R_, I_ = (128 + 4 * t, 144 + 4 * t) if hi else (32, 36)
            o = 44 + 8 * t + 4 * hi
            for p in range(2):
                a('v_cvt_pk_bf16_f32 v%d, v%d, v%d' % (o + p, R_ + 2 * p, R_ + 2 * p + 1))
                a('v_cvt_pk_bf16_f32 v%d, v%d, v%d' % (o + 2 + p, I_ + 2 * p, I_ + 2 * p + 1))
            a('ds_write_b64 v14, %s offset:%d' % (V(o, 2), (t + 2 * hi) * 1024))
            a('ds_write_b64 v9, %s offset:%d' % (V(o + 2, 2), (t + 2 * hi) * 1024))
    a('s_waitcnt lgkmcnt(0)')
    for q in range(4): a('ds_read_b128 %s, v12 offset:%d' % (V(112 + 4 * q, 4), q * 1024))
    for q in range(4):
        a('s_waitcnt lgkmcnt(%d)' % (3 - q))
        a('buffer_store_dwordx4 %s, v15, %s, s41 offen%s' % (V(112 + 4 * q, 4), srd(S_WS), SC()))
        if q < 3: a('s_add_u32 s41, s41, %d' % (8 * 17 * 4096))

CSLOT = [5, 6, 7, 8, 1, 2, 3, 4, 0, 5, 6]
GSLOT = [3, 4]
DSLOT = [7, 1, 8, 2, 9]
XSLOT = 0
def g_addr(bq): return GSLOT[bq] * SLOT
def d_addr(bq): return DSLOT[bq] * SLOT + (4096 if bq == 4 else 0)
HFR, AC, AF = 64, 152, 176
MC, MS, NMS, XV, TB = 208, 212, 216, 220, 224
GP = 232
VW2, VX2, VGW = 247, 253, 248
GF = 24
HPD = 4

def g2_setup(a):
    a('s_lshl_b32 s68, s4, 2'); a('s_and_b32 s52, s5, 3'); a('s_add_u32 s68, s68, s52')
    a('s_lshr_b32 s69, s5, 2')
    a('s_lshl_b32 s70, s68, 1'); a('s_lshr_b32 s52, s6, 1'); a('s_add_u32 s70, s70, s52')
    a('s_and_b32 s71, s6, 1')
    a('s_lshl_b32 s72, s70, 1'); a('s_add_u32 s72, s72, s71'); a('s_mul_i32 s72, s72, 43'); a('s_add_u32 s72, s72, s7'); a('s_lshl_b32 s72, s72, 10')
    a('s_lshl_b32 s73, s3, 11')
    a('s_cmp_ge_u32 s3, 6'); a('s_cselect_b32 s77, %d, -1' % (10 * 131072 - 32768))
    a('s_mul_i32 s74, s68, %d' % (17 * 4096)); a('s_add_u32 s74, s74, %d' % DB_OFF)
    a('s_and_b32 s52, s5, 3'); a('s_mul_i32 s52, s52, 3'); a('s_add_u32 s75, s69, s4'); a('s_add_u32 s75, s75, s52')
    for _ in range(2): a('s_cmp_ge_u32 s75, 11'); a('s_cselect_b32 s52, 11, 0'); a('s_sub_u32 s75, s75, s52')

def chunk_of(a, p):
    if p == 0: a('s_mov_b32 s52, s75'); return
    a('s_add_u32 s52, s75, %d' % p); a('s_cmp_ge_u32 s52, 11'); a('s_cselect_b32 s53, 11, 0'); a('s_sub_u32 s52, s52, s53')

def g2_w2addr(a, vreg):
    a('v_lshrrev_b32 v10, 3, v2')
    a('v_and_b32 v11, 7, v2')
    a('v_and_b32 v12, 6, v10')
    a('v_xor_b32 v11, v11, v12')
    a('s_lshl_b32 s52, s3, 14'); a('s_lshl_b32 s53, s69, 7'); a('s_add_u32 s52, s52, s53')
    a('v_lshlrev_b32 v10, 10, v10')
    a('v_lshl_add_u32 v10, v11, 4, v10')
    a('v_add_u32 v%d, s52, v10' % vreg)

def dma_w2(a, vm, c, vreg, zs=(0, 1)):
    chunk_of(a, c)
    a('s_lshl_b32 s52, s52, 17')
    a('s_min_u32 s52, s52, s77')
    for z in zs:
        if z: a('s_add_u32 s52, s52, 8192')
        a('s_add_u32 m0, s73, %d' % (CSLOT[c] * SLOT + z * 1024))
        a('buffer_load_dwordx4 v%d, %s, s52 offen lds' % (vreg, srd(S_W2)))
        vm.issue(('c', c))

def g2_hload(a, vm, c):
    chunk_of(a, c)
    a('s_add_u32 s53, s52, s7')
    a('s_lshl_b32 s52, s52, 12'); a('s_add_u32 s52, s52, s72')
    a('s_cmp_eq_u32 s53, 11'); a('s_cselect_b32 s53, 0x7f000000, s52')
    for z in range(2):
        i = 2 * c + z
        a('buffer_load_dwordx4 %s, v%d, %s, s%d offen offset:%d%s' % (V(HFR + 4 * i, 4), VL16, srd(S_WS), 52 + z, 2048 * z, SC()))
        vm.issue(('h', c))

def g2_xload(a):
    for i in range(2):
        a('buffer_load_dwordx2 %s, v%d, %s, 0 offen offset:%d' % (V(XV + 2 * i, 2), VX2, srd(S_X), 32 * i))
def g2_consts(a, vm, xl=True):
    a('s_lshl_b32 s52, s71, 20'); a('s_lshl_b32 s53, s70, 10'); a('s_add_u32 s52, s52, s53')
    a('s_lshl_b32 s53, s69, 7'); a('s_add_u32 s52, s52, s53'); a('s_lshl_b32 s53, s7, 6'); a('s_add_u32 s52, s52, s53')
    a('v_lshlrev_b32 v%d, 16, v3' % VX2)
    a('v_lshl_add_u32 v%d, v4, 3, v%d' % (VX2, VX2))
    a('v_add_u32 v%d, s52, v%d' % (VX2, VX2))
    if xl: g2_xload(a)
    a('v_lshrrev_b32 v10, 2, v3')
    a('v_lshl_add_u32 v10, v4, 2, v10')
    a('v_and_b32 v11, 6, v10')
    a('v_and_b32 v12, 3, v2')
    a('v_lshrrev_b32 v13, 1, v12')
    a('v_xor_b32 v11, v11, v13')
    a('v_and_b32 v12, 1, v12')
    a('v_lshlrev_b32 v10, 7, v10')
    a('v_lshl_add_u32 v10, v12, 3, v10')
    a('s_lshl_b32 s52, s7, 12')
    a('v_add_u32 v10, s52, v10')
    for mt in range(4):
        a('v_xor_b32 v12, %d, v11' % (2 * mt))
        a('v_lshl_add_u32 v%d, v12, 4, v10' % (TB + mt))
        a('v_add_u32 v%d, 0x10000, v%d' % (TB + 4 + mt, TB + mt))
        a('v_add_u32 v%d, 0x20000, v%d' % (240 + mt, TB + mt))
    a('s_lshl_b32 s52, s71, 10'); a('s_add_u32 s52, s52, s70')
    a('v_lshl_add_u32 v10, v3, 6, s52')
    a('v_lshlrev_b32 v11, 3, v4')
    a('v_mul_u32_u24 v11, v10, v11')
    a('v_and_b32 v11, 2047, v11')
    a('v_cvt_f32_u32 v11, v11'); a('v_cvt_f32_u32 v10, v10')
    a('v_mul_f32 v11, %s, v11' % fl(1 / 2048)); a('v_mul_f32 v10, %s, v10' % fl(1 / 2048))
    for j in range(8):
        if j:
            a('v_add_f32 v11, v11, v10'); a('v_fract_f32 v11, v11')
        a('v_cos_f32 v%d, v11' % (16 + j)); a('v_sin_f32 v%d, v11' % (24 + j))
    for p in range(4):
        a('v_cvt_pk_bf16_f32 v%d, v%d, v%d' % (MC + p, 16 + 2 * p, 17 + 2 * p))
        a('v_cvt_pk_bf16_f32 v%d, v%d, v%d' % (MS + p, 24 + 2 * p, 25 + 2 * p))
        a('v_cvt_pk_bf16_f32 v%d, -v%d, -v%d' % (NMS + p, 24 + 2 * p, 25 + 2 * p))
    a('s_lshl_b32 s52, s69, 6'); a('s_lshl_b32 s53, s6, 4'); a('s_add_u32 s52, s52, s53')
    a('v_add_u32 v10, s52, v3')
    a('s_lshl_b32 s52, s7, 4')
    a('v_lshl_add_u32 v11, v4, 2, s52')
    a('v_mul_u32_u24 v11, v10, v11'); a('v_and_b32 v11, 511, v11')
    a('v_lshlrev_b32 v12, 5, v10'); a('v_and_b32 v12, 511, v12')
    a('v_cvt_f32_u32 v10, v10'); a('v_cvt_f32_u32 v11, v11'); a('v_cvt_f32_u32 v12, v12')
    for r in (10, 11, 12): a('v_mul_f32 v%d, %s, v%d' % (r, fl(1 / 512), r))
    a('v_cos_f32 v%d, v11' % GP); a('v_sin_f32 v%d, v11' % (GP + 1))
    a('v_cos_f32 v%d, v10' % (GP + 2)); a('v_sin_f32 v%d, v10' % (GP + 3))
    a('v_cos_f32 v%d, v12' % (GP + 4)); a('v_sin_f32 v%d, v12' % (GP + 5))
    gs = -LOG2E * 2.0 ** -19
    a('v_mul_f32 v%d, %s, v%d' % (GP, fl(gs), GP)); a('v_mul_f32 v%d, %s, v%d' % (GP + 1, fl(gs), GP + 1))
    a('v_cmp_eq_u32 vcc, 0, v4')
    a('s_cmp_eq_u32 s7, 0'); a('s_cselect_b32 s52, 0.5, 1.0')
    a('v_mov_b32 v10, 1.0'); a('v_mov_b32 v11, s52')
    a('v_cndmask_b32 v%d, v10, v11, vcc' % (GP + 6))
    a('v_cndmask_b32 v%d, 0, 1.0, vcc' % (GP + 7))
    a('v_and_b32 v10, 1, v3'); a('v_cmp_eq_u32 vcc, 1, v10'); a('v_mov_b32 v10, 0x80008000')
    a('v_cndmask_b32 v251, 0, v10, vcc'); a('v_xor_b32 v252, v10, v251')
    a('s_lshl_b32 s52, s7, 12'); a('s_lshl_b32 s53, s6, 10'); a('s_add_u32 s52, s52, s53')
    a('v_add_u32 v%d, s52, v%d' % (VGW, VL16))
    a('v_add_u32 v%d, 0x10000, v%d' % (VGW + 1, VGW))
    a('v_add_u32 v%d, 0x20000, v%d' % (VGW + 2, VGW))
    a('v_and_b32 v245, 3, v2'); a('v_lshlrev_b32 v245, 8, v245')

def g_frag(a, bi):
    L = []
    c0, s0, cd, sd, cD, sD = range(GP, GP + 6)
    o = GF + 4 * bi
    if bi == 8:
        L.append('v_mul_f32 v10, v%d, v%d' % (c0, GP + 7))
        L.append('v_mul_f32 v11, -v%d, v%d' % (s0, GP + 7))
        L.append('v_mov_b32 v169, 0'); L.append('v_mov_b32 v171, 0')
        L.append('v_cvt_pk_bf16_f32 v168, v10, v169')
        L.append('v_cvt_pk_bf16_f32 v170, v11, v169')
    elif bi >= 4:
        for q in range(4): L.append('v_xor_b32 v%d, v%d, v%d' % (o + q, 250 + (q >> 1) + 1, o - 16 + q))
    else:
        pc, ps = c0, s0
        for j in range(1, 4):
            nc, ns = 8 + 2 * j, 9 + 2 * j
            L.append('v_mul_f32 v%d, v%d, v%d' % (nc, pc, cd))
            L.append('v_mul_f32 v%d, v%d, v%d' % (ns, ps, cd))
            L.append('v_fma_f32 v%d, -v%d, v%d, v%d' % (nc, ps, sd, nc))
            L.append('v_fmac_f32 v%d, v%d, v%d' % (ns, pc, sd))
            pc, ps = nc, ns
        if bi == 0:
            L.append('v_mul_f32 v20, v%d, v%d' % (c0, GP + 6))
            L.append('v_cvt_pk_bf16_f32 v%d, v20, v10' % o)
        else:
            L.append('v_cvt_pk_bf16_f32 v%d, v%d, v10' % (o, c0))
        L.append('v_cvt_pk_bf16_f32 v%d, v12, v14' % (o + 1))
        L.append('v_cvt_pk_bf16_f32 v%d, -v%d, -v11' % (o + 2, s0))
        L.append('v_cvt_pk_bf16_f32 v%d, -v13, -v15' % (o + 3))
        L.append('v_mul_f32 v20, v%d, v%d' % (c0, cD))
        L.append('v_mul_f32 v21, v%d, v%d' % (s0, cD))
        L.append('v_fma_f32 v20, -v%d, v%d, v20' % (s0, sD))
        L.append('v_fmac_f32 v21, v%d, v%d' % (c0, sD))
        L.append('v_mov_b32 v%d, v20' % c0); L.append('v_mov_b32 v%d, v21' % s0)
    return L

def g_write(bi):
    off = g_addr(bi >> 1) + (bi & 1) * 8192
    return 'ds_write_b128 v%d, %s offset:%d' % (VGW + (off >> 16), V(GF + 4 * bi, 4), off & 65535)

SYNC_I = 11
GPLAN = {1: [('h', 4)], 3: [('h', 5), ('c', 9), ('c', 10)], 5: [('h', 6)], 7: [('h', 7)], 9: [('h', 8)], 11: [('h', 9), ('d', 0)], 12: [('d', 2)], 13: [('h', 10), ('d', 1)], 14: [('d', 3)], 15: [('d', 4)]}
SPB = {0: {('d', 2)}, 4: {('d', 4)}}
AFB = (176, 192, 40)
def g2_main(a, vm, ST_, poll_d, wait_d, hook):
    def dma_d(bq):
        n = 2 if bq < 4 else 1
        for z in range(n):
            if bq < 4:
                a('s_add_u32 s52, s74, s73')
                a('s_add_u32 s52, s52, %d' % (bq * SLOT + z * 1024))
                a('s_add_u32 m0, s73, %d' % (d_addr(bq) + z * 1024))
            else:
                a('s_lshl_b32 s53, s6, 10'); a('s_add_u32 s52, s74, s53'); a('s_add_u32 s52, s52, 65536')
                a('s_add_u32 m0, s53, %d' % d_addr(4))
            a('buffer_load_dwordx4 v%d, %s, s52 offen%s lds' % (VL16, srd(S_WS), SC()))
            vm.issue(('d', bq))
    def rd(i):
        c, z = i >> 1, i & 1
        off = CSLOT[c] * SLOT + z * 8192
        L = []
        for mt in range(4):
            for h2 in range(2):
                o = off + h2 * 2048
                base = TB + mt if o < 65536 else (TB + 4 + mt if o < 131072 else 240 + mt)
                L.append('ds_read_b64_tr_b16 %s, v%d offset:%d' % (V(AFB[i % 3] + mt * 4 + h2 * 2, 2), base, o & 65535))
        return L
    vm.wait({('h', 0)}); a('s_waitcnt lgkmcnt(0)'); a('s_barrier')
    ST_('first2')
    hook('first2')
    def issue(key):
        for kind, x in GPLAN.get(key, []):
            if kind == 'h': g2_hload(a, vm, x)
            elif kind == 'd': dma_d(x)
            elif kind == 'c': dma_w2(a, vm, x, VW2)
    def ffn(i0, i1):
        for s_ in rd(i0) + rd(i0 + 1): a(s_)
        for i in range(i0, i1):
            a('s_waitcnt lgkmcnt(%d)' % (8 if i + 1 < i1 else 0))
            if i == 3: a('s_barrier')
            if i == SYNC_I:
                ST_('sync')
                wait_d()
                a('s_barrier')
                ST_('dok')
            if i == 14:
                vm.wait({('c', 8), ('c', 9), ('c', 10)})
                a('s_barrier')
            if i == 15:
                a('s_barrier')
                for bi in range(4): a(g_write(bi))
            issue(i)
            fill = rd(i + 2) if i + 2 < i1 else []
            if i == SYNC_I - 2: poll_d()
            if i % 2 == 0 and i: vm.wait({('h', i // 2)})
            gl = []
            if 3 <= i <= 6: gl = g_frag(a, i - 3)
            if i == 7: gl = g_frag(a, 8)
            mm = ['%s %s, %s, %s, %s' % (MF16, V(AC + 4 * mt, 4), V(AFB[i % 3] + mt * 4, 4), V(HFR + 4 * i, 4), '0' if i == 0 else V(AC + 4 * mt, 4)) for mt in range(4)]
            per = (len(gl) + 3) // 4
            for mt in range(4):
                a(mm[mt])
                for s_ in fill[2 * mt:2 * mt + 2]: a(s_)
                for s_ in gl[per * mt:per * (mt + 1)]: a(s_)
    ffn(0, 22)
    ST_('ffn')
    a('s_lshl_b32 s52, s7, 12'); a('s_lshr_b32 s53, s6, 1'); a('s_lshl_b32 s53, s53, 11'); a('s_add_u32 s52, s52, s53')
    a('v_lshrrev_b32 v10, 2, v3')
    a('v_lshl_add_u32 v10, v4, 3, v10')
    a('v_lshlrev_b32 v10, 6, v10')
    a('v_and_b32 v11, 3, v2')
    a('v_lshl_add_u32 v10, v11, 4, v10')
    a('v_add_u32 v10, s52, v10')
    a('v_and_b32 v11, 1, v4'); a('v_lshl_add_u32 v10, v11, 3, v10')
    a('v_add_u32 v11, 0x10000, v10')
    a('v_add_u32 v9, 0x20000, v10')
    a('v_xor_b32 v96, 8, v10'); a('v_xor_b32 v97, 8, v11'); a('v_xor_b32 v98, 8, v9')
    a('s_lshl_b32 s52, s7, 12'); a('s_add_u32 s52, s52, %d' % g_addr(0))
    a('v_add_u32 v13, s52, v%d' % VL16)
    ORD = [0, 4, 1, 5, 2, 6, 3, 7, 8]
    DBUF, GBUF, YBUF, YF = (16, 24, 88, 100), (112, 128), (64, 72), 80
    def dreads(k):
        bi = ORD[k]
        o = DBUF[k % 4]
        da = d_addr(bi >> 1) + (bi & 1) * 8192
        vb = (10, 11, 9)[da >> 16]; vb2 = 96 + (da >> 16); da &= 65535
        L = []
        for h2 in range(2):
            L.append('ds_read_b64_tr_b16 %s, v%d offset:%d' % (V(o + 2 * h2, 2), vb, da + h2 * 256))
            L.append('ds_read_b64_tr_b16 %s, v%d offset:%d' % (V(o + 4 + 2 * h2, 2), vb2, da + h2 * 256))
        return L
    def greads(bi):
        ga = g_addr(bi >> 1) + (bi & 1) * 8192 - g_addr(0)
        return ['ds_read_b128 %s, v13 offset:%d' % (V(GBUF[0] + 4 * mt, 4), ga + mt * 1024) for mt in range(4)]
    def ymm(k):
        o = DBUF[k % 4]; YA = YBUF[k & 1]; YB = YA + 4
        Dr, Di = V(o, 4), V(o + 4, 4)
        return ['%s %s, %s, %s, 0' % (MF16, V(YA, 4), Dr, V(MC, 4)),
                '%s %s, %s, %s, 0' % (MF16, V(YB, 4), Di, V(MC, 4)),
                '%s %s, %s, %s, %s' % (MF16, V(YA, 4), Di, V(NMS, 4), V(YA, 4)),
                '%s %s, %s, %s, %s' % (MF16, V(YB, 4), Dr, V(MS, 4), V(YB, 4))]
    def cvts(k):
        YA = YBUF[k & 1]
        return ['v_cvt_pk_bf16_f32 v%d, v%d, v%d' % (YF + 4 * (k & 1) + p, YA + 2 * p, YA + 2 * p + 1) for p in range(4)]
    def gmm(k):
        L = []
        for mt in range(4):
            g_ = V(168, 4) if k == 8 else V(GBUF[k & 1] + 4 * mt, 4)
            L.append('%s %s, %s, %s, %s' % (MF16, V(AC + 4 * mt, 4), g_, V(YF + 4 * (k & 1), 4), V(AC + 4 * mt, 4)))
        return L
    def dbar(k):
        if k in SPB:
            vm.wait(SPB[k]); a('s_waitcnt lgkmcnt(0)'); a('s_barrier')
    dbar(0)
    ST_('d0')
    for x in dreads(0) + dreads(1) + greads(0) + dreads(2): a(x)
    a('s_waitcnt lgkmcnt(12)')
    for m in ymm(0): a(m)
    prev = 8
    gpend = 4
    for k in range(8):
        low = k % 2 == 0
        if k + 3 in SPB:
            dbar(k + 3)
        else:
            a('s_waitcnt lgkmcnt(%d)' % prev)
        rds = ([] if low or k + 1 > 7 else greads(ORD[k + 1])) + (dreads(k + 3) if k + 3 <= 8 else [])
        cv = cvts(k)
        xo = ['v_xor_b32 v%d, v%d, v%d' % (GBUF[1] + q, 251 + ((q >> 1) & 1), GBUF[0] + q) for q in range(16)] if low else []
        if k == 7:
            a('s_cmp_eq_u32 s7, 0')
            a('s_cbranch_scc0 L_g2_sp1')
        ym = ymm(k + 1)
        for i in range(4):
            a(ym[i]); a(cv[i])
            for x in rds[2 * i:2 * i + 2]: a(x)
        if low: a('s_waitcnt lgkmcnt(%d)' % (gpend + len(rds)))
        for i, m in enumerate(gmm(k)):
            a(m)
            for x in xo[4 * i:4 * i + 4]: a(x)
        prev = len(rds)
        gpend = len(rds) - 4 if not low else 0
        if k == 7:
            for x in cvts(8): a(x)
            for m in gmm(8): a(m)
            a('s_branch L_g2_sp')
            a.label('L_g2_sp1')
            for x in cv: a(x)
            for m in gmm(7): a(m)
            a.label('L_g2_sp')
    ST_('spec')
    a('s_lshl_b32 s52, s6, 1'); a('s_add_u32 s53, s52, s7'); a('s_xor_b32 s52, s53, 1')
    a('s_lshl_b32 s52, s52, 11'); a('s_lshl_b32 s53, s53, 11')
    a('s_add_u32 s52, s52, %d' % (XSLOT * SLOT)); a('s_add_u32 s53, s53, %d' % (XSLOT * SLOT))
    a('v_add_u32 v10, s52, v%d' % VL16); a('v_add_u32 v11, s53, v%d' % VL16)
    a('s_mov_b32 s54, %s' % fl(-math.log(2.0)))
    a('s_cmp_eq_u32 s7, 0')
    a('s_cbranch_scc0 L_g2_f1')
    for kh in range(2):
        if kh: a.label('L_g2_f1')
        send = AC + 8 if kh == 0 else AC
        keep = AC if kh == 0 else AC + 8
        for i in range(2): a('ds_write_b128 v10, %s offset:%d' % (V(send + 4 * i, 4), i * 1024))
        a('s_waitcnt lgkmcnt(0)'); a('s_barrier')
        for i in range(2): a('ds_read_b128 %s, v11 offset:%d' % (V(16 + 4 * i, 4), i * 1024))
        for i in range(2):
            for p in range(2):
                a('v_lshlrev_b32 v%d, 16, v%d' % (32 + 4 * i + 2 * p, XV + 2 * i + p))
                a('v_and_b32 v%d, 0xffff0000, v%d' % (33 + 4 * i + 2 * p, XV + 2 * i + p))
        a('s_waitcnt lgkmcnt(0)')
        for i in range(2):
            for r in range(4):
                k0 = keep + 4 * i + r
                a('v_add_f32 v%d, v%d, v%d' % (k0, k0, 16 + 4 * i + r))
                a('v_fma_f32 v%d, v%d, s54, v%d' % (k0, k0, 32 + 4 * i + r))
            for p in range(2):
                a('v_cvt_pk_bf16_f32 v%d, v%d, v%d' % (26 + 2 * i + p, keep + 4 * i + 2 * p, keep + 4 * i + 2 * p + 1))
            a('buffer_store_dwordx2 %s, v%d, %s, 0 offen offset:%d' % (V(26 + 2 * i, 2), VX2, srd(S_OUT), 32 * i))
        ST_.end()
        a('s_endpgm')

def kd(name, vgpr):
    return '''.p2align 6
.amdhsa_kernel %s
  .amdhsa_next_free_vgpr %d
  .amdhsa_next_free_sgpr 102
  .amdhsa_accum_offset %d
  .amdhsa_group_segment_fixed_size 0
  .amdhsa_kernarg_size 72
  .amdhsa_user_sgpr_count 2
  .amdhsa_user_sgpr_kernarg_segment_ptr 1
  .amdhsa_system_sgpr_workgroup_id_x 1
.end_amdhsa_kernel
''' % (name, vgpr, (vgpr + 3) // 4 * 4)
def khead(a, n): a.raw('.globl %s\n.p2align 8\n.type %s,@function\n%s:' % (n, n, n))


def g1v5_fill_guard(): return []
def cnt_off(i): return CNT_OFF + i * 256
CA, CH, CD = 0, 64, 80

def poll(a, lab, soff, expected, vtmp='v10', vz='v9'):
    a.label(lab)
    a('buffer_load_dword %s, %s, %s, %s offen sc1' % (vtmp, vz, srd(S_WS), soff))
    a('s_waitcnt vmcnt(0)')
    a('v_readfirstlane_b32 s52, %s' % vtmp)
    a('s_cmp_ge_u32 s52, %d' % expected)
    a('s_cbranch_scc1 %s_ok' % lab)
    a('s_sleep 1')
    a('s_branch %s' % lab)
    a.label(lab + '_ok')

FSEQ = [(c, z) for c in (3, 8, 4, 5, 6, 7, 0, 1, 2) for z in (0, 1)]
FPLAN = [('k11', 1), ('k12', 1), ('l12', 1), ('k13', 1), ('l13', 1), ('k14', 1), ('l14', 1), ('k15', 1), ('l15', 1), ('kend', 3), ('e0', 2), ('e1', 1), ('e2', 1), ('e3', 1), ('e4', 1)]
SSEQ = []
SPLAN = []
def mkplan(seq, plan):
    d = {}; i = 0
    for pt, n in plan:
        d[pt] = seq[i:i + n]; i += n
    assert i == len(seq)
    return d
PLAN = {'F': {}, 'S': {}}
F_PRE = 2
S_POST = [0, 1, 2, 3]
W_PTS = {'s6': (0, 1), 's7': (2, 3)}
PF1, PF2, PF3 = False, {'F': 's5', 'S': 's7'}, False
SKIPST = set()
CPF = True
S_PRE = 2
def main_fused(out):
    global MODE
    MODE = 'fused'
    import g1v10 as g1
    a = Asm()
    K = NAME + '_kernel'
    a.raw('; @launch grid=(256,1,1) block=(512,1,1) lds=163840')
    a.raw('.amdgcn_target "amdgcn-amd-amdhsa--gfx950"\n.text')
    khead(a, K); prologue(a, 'L_x')
    st = Stamps(a, 0); st.start()
    vm = VM(a)
    def hooks(ty, pt):
        if pt == 'pf':
            if not PF1: return
            a('s_lshl_b32 s52, s5, 3'); a('s_add_u32 s52, s52, s3')
            if ty == 'F':
                a('s_cmp_ge_u32 s52, 64'); a('s_cbranch_scc1 L_pfw')
                a('s_lshr_b32 s53, s52, 1'); a('s_lshl_b32 s53, s53, 16'); a('s_and_b32 s52, s52, 1'); a('s_lshl_b32 s52, s52, 13'); a('s_add_u32 s53, s53, s52')
                a('s_lshr_b32 s52, s4, 1'); a('s_lshl_b32 s52, s52, 14'); a('s_add_u32 s53, s53, s52')
                a('v_lshlrev_b32 v10, 7, v2')
                a('buffer_load_dword v190, v10, %s, s53 offen' % srd(S_X))
                a('s_branch L_pfd')
                a.label('L_pfw')
            a('s_sub_u32 s52, s52, 64')
            a('s_lshr_b32 s53, s52, 5'); a('s_lshl_b32 s53, s53, 1'); a('s_and_b32 s54, s4, 1'); a('s_add_u32 s53, s53, s54')
            a('s_and_b32 s52, s52, 31'); a('s_mul_i32 s52, s52, %d' % (16 * 2752))
            a('s_cmp_ge_u32 s53, 11'); a('s_cselect_b32 s52, 0x7f000000, s52')
            a('s_lshl_b32 s53, s53, 8'); a('s_add_u32 s52, s52, s53')
            a('v_lshrrev_b32 v10, 2, v2'); a('v_mul_u32_u24 v10, 2752, v10'); a('v_and_b32 v11, 3, v2'); a('v_lshl_add_u32 v10, v11, 6, v10')
            a('buffer_load_dword v190, v10, %s, s52 offen' % srd(S_W1))
            if ty == 'F': a.label('L_pfd')
            vm.issue('pf')
            return
        if PF2 and pt == PF2[ty]:
            a('s_and_b32 s53, s5, 3')
            if ty == 'F':
                a('s_lshr_b32 s52, s44, 1'); a('s_lshl_b32 s52, s52, 2'); a('s_add_u32 s52, s52, s53'); a('s_lshl_b32 s52, s52, 3'); a('s_add_u32 s52, s52, s3')
                a('s_mov_b32 s55, 0')
            else:
                a('s_sub_u32 s52, s44, 11'); a('s_lshr_b32 s52, s52, 1'); a('s_lshl_b32 s52, s52, 2'); a('s_add_u32 s52, s52, s53'); a('s_add_u32 s52, s52, 160')
                a('s_lshl_b32 s55, s3, 10')
                a('s_and_b32 s53, s4, 1'); a('s_cmp_eq_u32 s53, 0'); a('s_cselect_b32 s52, 200, s52')
            a('s_mul_i32 s53, s4, 21'); a('s_add_u32 s53, s53, s52'); a('s_cmp_ge_u32 s53, 172'); a('s_cselect_b32 s54, 172, 0'); a('s_sub_u32 s53, s53, s54')
            a('s_lshl_b32 s53, s53, 13'); a('s_add_u32 s53, s53, s55')
            a('s_cmp_ge_u32 s52, 172'); a('s_cselect_b32 s53, 0x7f000000, s53')
            if ty == 'S': a('s_mov_b64 exec, 0xff')
            a('buffer_load_dword v190, v244, %s, s53 offen' % srd(S_W2)); vm.issue('pf')
            if ty == 'S': a('s_mov_b64 exec, -1')
        if pt == 'start':
            a('v_lshlrev_b32 v244, 7, v2')
            if CPF:
                a('s_and_b32 s52, s5, 7'); a('s_cmp_lg_u32 s52, s3')
                a('s_cbranch_scc1 L_nocpf_%s' % ty)
                a('s_getpc_b64 s[52:53]')
                a.label('L_pc_%s' % ty)
                a('s_sub_u32 s52, s52, L_pc_%s-%s' % (ty, NAME + '_kernel')); a('s_subb_u32 s53, s53, 0')
                a('s_lshl_b32 s54, s3, 13')
                a('v_add_u32 v10, s54, v244')
                a('v_min_u32 v10, L_codeend-%s-4, v10' % (NAME + '_kernel'))
                a('global_load_dword v191, v10, s[52:53]')
                a.label('L_nocpf_%s' % ty)
            if ty == 'F':
                a('v_mov_b32 v9, 0')
                a('s_mov_b32 s48, 0')
                a('s_or_b32 s52, s2, s3')
                a('s_cmp_lg_u32 s52, 0')
                a('s_cbranch_scc1 L_noinit')
                a('v_lshlrev_b32 v10, 8, v2')
                a('s_mov_b32 s52, %d' % CNT_OFF)
                a('buffer_store_dword v9, v10, %s, s52 offen sc1' % srd(S_WS))
                a('s_add_u32 s52, s52, 16384')
                a('buffer_store_dword v9, v10, %s, s52 offen sc1' % srd(S_WS))
                a('v_mov_b32 v10, 1')
                a('s_waitcnt vmcnt(0)')
                a('s_mov_b64 exec, 1')
                a('buffer_store_dword v10, v9, %s, 0 offen sc1' % srd(S_DBG))
                a('s_mov_b64 exec, -1')
                a.label('L_noinit')
            g2_setup(a); g2_w2addr(a, VW2)
            if ty == 'F': g2_consts(a, None, False)
            if ty == 'S':
                p2_setup(a)
            return
        if ty == 'S' and pt in W_PTS: p2_wloads(a, vm, W_PTS[pt])
        if pt in ('kend', 'e0', 'e1', 'e2', 'e4', 'e6', 's2', 's4', 's6'): st('x' + pt)
        if pt == 'kend':
            a('v_mov_b32 v9, 0')
            a('v_mov_b32 v10, %d' % LFLAG)
            a('ds_write_b32 v10, v9')
            a('ds_write_b32 v10, v9 offset:4')
            a('ds_write_b32 v10, v9 offset:8')
            a('buffer_load_dword v246, v9, %s, 0 offen sc1' % srd(S_DBG))
        for c, z in PLAN[ty].get(pt, []): dma_w2(a, vm, c, VW2, (z,))
    def publish(uid, cnt_sgpr_code):
        a('s_cmp_lg_u32 s3, 0')
        a('s_cbranch_scc1 L_nopub%s' % uid)
        a('v_lshlrev_b32 v11, 11, v2')
        a('v_mov_b32 v10, 1')
        a('s_mov_b64 exec, 1')
        a.label('L_init_poll%s' % uid)
        a('v_readfirstlane_b32 s52, v246')
        a('s_cmp_lg_u32 s52, 0')
        a('s_cbranch_scc1 L_init_ok%s' % uid)
        a('buffer_load_dword v246, v9, %s, 0 offen sc1' % srd(S_DBG))
        a('s_waitcnt vmcnt(0)')
        a('s_branch L_init_poll%s' % uid)
        a.label('L_init_ok%s' % uid)
        cnt_sgpr_code()
        a('s_mov_b64 exec, %d' % (0xff if uid == 'S' else 1))
        a('buffer_atomic_add v10, v11, %s, s52 offen sc1' % srd(S_WS))
        a('s_mov_b64 exec, -1')
        a.label('L_nopub%s' % uid)
    def spin(lab, off):
        a('v_mov_b32 v10, %d' % LFLAG)
        a.label(lab)
        a('ds_read_b32 v11, v10 offset:%d' % off)
        a('s_waitcnt lgkmcnt(0)')
        a('v_readfirstlane_b32 s52, v11')
        a('s_cmp_lg_u32 s52, 0')
        a('s_cbranch_scc1 %s_ok' % lab)
        a('s_sleep 1')
        a('s_branch %s' % lab)
        a.label(lab + '_ok')
    def dpublish(uid, nvm):
        a('s_and_b32 s52, s101, 3'); a('s_lshl_b32 s52, s52, 8'); a('s_add_u32 s52, s52, %d' % cnt_off(CD))
        a('v_mov_b32 v10, %d' % LFLAG); a('v_mov_b32 v11, 1'); a('v_lshlrev_b32 v12, 10, v2')
        a('s_waitcnt vmcnt(%d)' % nvm)
        a('s_mov_b64 exec, 1')
        a('ds_add_rtn_u32 v10, v10, v11 offset:8')
        a('s_waitcnt lgkmcnt(0)')
        a('v_readfirstlane_b32 s53, v10')
        a('s_add_u32 s53, s53, 1')
        a('s_cmp_lg_u32 s53, s42')
        a('s_cbranch_scc1 L_nod1%s' % uid)
        a('s_mov_b64 exec, 0xff')
        a('buffer_atomic_add v11, v12, %s, s52 offen sc1' % srd(S_WS))
        a.label('L_nod1%s' % uid)
        a('s_mov_b64 exec, -1')
        st('dpub')
    g1.g1_phase(a, st, vm, hooks, 'L_F_end')
    st('g1st')
    a('s_barrier')
    a('s_cmp_eq_u32 s3, 7'); a('s_cbranch_scc1 L_s7a')
    npost = 0
    for c in S_POST[:S_PRE]: dma_w2(a, VM(a), c, VW2); npost += 2
    a.label('L_s7a')
    gen_ftab(a)
    put_ftab(a)
    a('v_mov_b32 v9, 0')
    a('s_cmp_eq_u32 s3, 7'); a('s_cbranch_scc1 L_s7b')
    p2_wzero(a)
    a('s_waitcnt vmcnt(%d) lgkmcnt(0)' % npost)
    a('s_barrier')
    st('pb')
    publish('S', lambda: (a('s_sub_u32 s52, s44, 11'), a('s_lshl_b32 s52, s52, 8'), a('s_add_u32 s52, s52, %d' % cnt_off(CA))))
    p2_fread(a)
    for c in S_POST[S_PRE:] + [4]: dma_w2(a, VM(a), c, VW2)
    p2_wtrans(a)
    a('s_barrier')
    g2_consts(a, None)
    p2_pre(a)
    st('rdy')
    spin('L_spinA', 4)
    st('aok')
    a('s_cmp_eq_u32 s48, 0'); a('s_cbranch_scc1 L_noal')
    p2_aload(a)
    a.label('L_noal')
    for c in (5, 6, 7): dma_w2(a, VM(a), c, VW2)
    a('s_cmp_eq_u32 s48, 0'); a('s_cbranch_scc1 L_hwS')
    p2_compute(a, 6, st)
    st('p2')
    a('v_mov_b32 v10, %d' % LFLAG)
    a('ds_read_b32 v11, v10')
    a('s_waitcnt lgkmcnt(0)')
    a('v_readfirstlane_b32 s52, v11')
    a('s_cmp_lg_u32 s52, 0')
    a('s_cbranch_scc1 L_hwS')
    dpublish('a', 0)
    a('s_mov_b32 s48, 0')
    a('s_branch L_hwS')
    a.label('L_s7b')
    a('s_waitcnt vmcnt(0) lgkmcnt(0)')
    a('s_barrier')
    st('pb')
    a('s_barrier')
    a('s_lshl_b32 s55, s4, 11'); a('s_add_u32 s55, s55, %d' % cnt_off(CA))
    a.label('L_pollA')
    for i in range(5): a('s_buffer_load_dword s%d, %s, s55 offset:%d glc' % (56 + i, srd(S_WS), 256 * i))
    a('s_waitcnt lgkmcnt(0)')
    a('s_min_u32 s56, s56, s57'); a('s_min_u32 s58, s58, s59'); a('s_min_u32 s56, s56, s60'); a('s_min_u32 s56, s56, s58')
    a('s_cmp_lt_u32 s56, 16')
    a('s_cbranch_scc1 L_pollA')
    a('v_mov_b32 v10, %d' % LFLAG); a('v_mov_b32 v11, 1')
    a('ds_write_b32 v10, v11 offset:4')
    st('aok')
    g2_consts(a, None)
    for c in range(8): dma_w2(a, VM(a), c, VW2)
    a('s_branch L_ph')
    a.label('L_F_end')
    st('g1st')
    a('s_barrier')
    a('v_mov_b32 v9, 0')
    for c in range(F_PRE): dma_w2(a, VM(a), c, VW2)
    a('s_waitcnt vmcnt(%d) lgkmcnt(0)' % (2 * F_PRE))
    a('s_barrier')
    st('pb')
    publish('F', lambda: (a('s_lshl_b32 s52, s43, 8'), a('s_add_u32 s52, s52, %d' % cnt_off(CH))))
    for c in range(F_PRE, 9): dma_w2(a, VM(a), c, VW2)
    g2_xload(a)
    a('s_cmp_lg_u32 s3, 7'); a('s_cbranch_scc1 L_hw')
    a.label('L_ph')
    a('s_lshr_b32 s52, s68, 1'); a('s_lshl_b32 s52, s52, 8'); a('s_add_u32 s55, s52, %d' % cnt_off(CH))
    a.label('L_pollH')
    a('s_buffer_load_dword s52, %s, s55 glc' % srd(S_WS))
    a('s_waitcnt lgkmcnt(0)')
    a('s_cmp_lt_u32 s52, 11')
    a('s_cbranch_scc1 L_pollH')
    a('v_mov_b32 v10, %d' % LFLAG); a('v_mov_b32 v11, 1')
    a('ds_write_b32 v10, v11')
    a('s_cmp_lt_u32 s44, 11'); a('s_cbranch_scc1 L_hw')
    a.label('L_hwS')
    a('s_waitcnt lgkmcnt(0)')
    a('s_barrier')
    a.label('L_hw')
    spin('L_spinH', 0)
    st('hok')
    vm.q = []
    if PF3:
        a('s_mul_i32 s52, s68, %d' % (4 * 43 * 1024)); a('s_mul_i32 s53, s69, %d' % (172 * 128)); a('s_add_u32 s52, s52, s53')
        a('s_mul_i32 s53, s3, %d' % (22 * 128)); a('s_add_u32 s52, s52, s53')
        a('s_mov_b64 exec, 0x3fffff')
        a('buffer_load_dword v190, v244, %s, s52 offen sc1' % srd(S_WS))
        a('s_mov_b64 exec, -1')
    for c in range(HPD): g2_hload(a, vm, c)
    a('s_cmp_eq_u32 s48, 0')
    a('s_cbranch_scc1 L_nod')
    dpublish('b', 2 * HPD)
    a.label('L_nod')
    vmF = VM(a); vmF.q = list(vm.q)
    class Dual:
        def __init__(s_, m1, m2): s_.m = [m1, m2]
        def issue(s_, tag): [m.q.append(tag) for m in s_.m]
        def wait(s_, tags):
            ns = []
            for m in s_.m:
                idx = [i for i, t in enumerate(m.q) if t in tags]
                if idx:
                    ns.append(len(m.q) - 1 - max(idx)); m.q = m.q[max(idx) + 1:]
            if ns: a('s_waitcnt vmcnt(%d)' % min(ns))
    dv = Dual(vm, vmF)
    def dpolls():
        for i in range(4): a('s_buffer_load_dword s%d, %s, s60 offset:%d glc' % (56 + i, srd(S_WS), 256 * i))
    def poll_d():
        a('s_cmp_lg_u32 s3, 7')
        def body():
            a('s_lshl_b32 s60, s4, 10'); a('s_add_u32 s60, s60, %d' % cnt_off(CD))
            dpolls()
        a.skip('s_cbranch_scc1', 'L_pd1', body)
    def wait_d():
        a('s_cmp_lg_u32 s3, 7')
        a('s_cbranch_scc1 L_wd_ok')
        a.label('L_wd')
        a('s_waitcnt lgkmcnt(0)')
        a('s_min_u32 s56, s56, s57'); a('s_min_u32 s58, s58, s59'); a('s_min_u32 s56, s56, s58')
        a('s_cmp_ge_u32 s56, 20')
        a('s_cbranch_scc1 L_wd_ok')
        a('s_sleep 1')
        dpolls()
        a('s_branch L_wd')
        a.label('L_wd_ok')
    def hook(pt):
        if pt == 'first2':
            a('s_cmp_lt_u32 s44, 11')
            a.skip('s_cbranch_scc1', 'L_nop8', lambda: dma_w2(a, vm, 8, VW2))
    g2_main(a, dv, st, poll_d, wait_d, hook)
    a.label('L_x'); a('s_endpgm')
    a.raw('L_codeend:')
    a.raw('.section .rodata,"a"')
    a.raw(kd(K, 256))
    open(out, 'w').write(a.text())
    print('lines', len(a.lines), 'nops', a.nops)
    if STAMP: print(','.join(st.names))

if __name__ == '__main__':
    import gen10 as gen
    if 'stamp' in sys.argv[2:]: gen.STAMP = True
    for x in sys.argv[2:]:
        if x.startswith('skip='): gen.SKIPST = set(x[5:].split(','))
        elif '=' in x:
            k_, v_ = x.split('=', 1); setattr(gen, k_, eval(v_))
    out = sys.argv[1] if len(sys.argv) > 1 else 'cdna_kernels/%s.s' % NAME
    gen.main_fused(out)
```
